```python
import torch

def _softmax(x, axis=-1):
    return torch.softmax(x, dim=axis)
def _gelu(x):
    return torch.nn.functional.gelu(x, approximate="tanh")
def _silu(x):
    return torch.nn.functional.silu(x)
def _sigmoid(x):
    return torch.sigmoid(x)
def _layernorm(x, axis=-1, eps=1e-5):
    m = x.mean(dim=axis, keepdim=True)
    v = x.var(dim=axis, keepdim=True, unbiased=False)
    return (x - m) / torch.sqrt(v + eps)
def _scatter_add(tgt, idx, src, axis=0):
    return tgt.clone().index_add_(axis, idx, src)
def _segment_sum(src, seg, n):
    out = torch.zeros((n,) + src.shape[1:], dtype=src.dtype)
    return out.index_add_(0, seg, src)
def _pad(x, pw):
    flat = tuple(v for pair in reversed(pw) for v in pair)
    return torch.nn.functional.pad(x, flat)

kernel_name = 'sequential_preLN__linear_attn_block__mixer_channel_mlp__prompt'

def setup_inputs():

    _w = (lambda a: (lambda t: t.to(torch.bfloat16) if t.is_floating_point() else t)(torch.as_tensor(a)))
    def _A_setup():
        B, S, D = 1, 2048, 640
        return {
            "x": _w((lambda *s: torch.randn(*s, dtype=torch.bfloat16) * 0.05)(B, S, D)),
            "wqkv": _w((lambda *s: torch.randn(*s, dtype=torch.bfloat16) * 0.05)(D, 3 * D)),
            "wo": _w((lambda *s: torch.randn(*s, dtype=torch.bfloat16) * 0.05)(D, D)),
        }
    _A_in = _A_setup()

    def _B_setup():
        B, S, D, F = 1, 2048, 640, 1536
        return {
            "x": _w((lambda *s: torch.randn(*s, dtype=torch.bfloat16) * 0.05)(B, S, D)),
            "w1": _w((lambda *s: torch.randn(*s, dtype=torch.bfloat16) * 1.6)(D, F) * (D ** -0.5)),
            "b1": _w((lambda *s: torch.randn(*s, dtype=torch.bfloat16) * 0.4)(F)),
            "w2": _w((lambda *s: torch.randn(*s, dtype=torch.bfloat16) * 0.05)(F, D) * (F ** -0.5)),
            "b2": _w((lambda *s: torch.randn(*s, dtype=torch.bfloat16) * 0.05)(D)),
        }
    _B_in = _B_setup()

    return {
        "A_x": _A_in["x"],
        "A_wqkv": _A_in["wqkv"],
        "A_wo": _A_in["wo"],
        "B_x": _B_in["x"],
        "B_w1": _B_in["w1"],
        "B_b1": _B_in["b1"],
        "B_w2": _B_in["w2"],
        "B_b2": _B_in["b2"],
    }

def reference(A_x, A_wqkv, A_wo, B_x, B_w1, B_b1, B_w2, B_b2):
    def _A_ref(x, wqkv, wo):
        B, S, D = x.shape
        H = 32; Dh = D // H
        qkv = (lambda x, *d: x.permute(*d))((x @ wqkv).reshape(B, S, 3, H, Dh), 2, 0, 3, 1, 4)
        q, k, v = qkv[0], qkv[1], qkv[2]
        phi = lambda t: torch.where(t > 0, t + 1, torch.exp(t)) + 1e-6
        pq, pk = phi(q), phi(k)
        kv = torch.einsum("bhsd,bhse->bhde", pk, v)
        z = torch.einsum("bhsd->bhd", pk)
        num = torch.einsum("bhqd,bhde->bhqe", pq, kv)
        den = torch.einsum("bhqd,bhd->bhq", pq, z)[..., None] + 1e-6
        o = num / den
        return (lambda x, *d: x.permute(*d))(o, 0, 2, 1, 3).reshape(B, S, D) @ wo

    def _B_ref(x, w1, b1, w2, b2):
        y = _layernorm(x, axis=-1)
        h = _gelu(torch.einsum("bsd,df->bsf", y, w1) + b1)
        return torch.einsum("bsf,fd->bsd", h, w2) + b2

    x = A_x
    h = x + _A_ref(_layernorm(x, axis=-1), A_wqkv, A_wo)
    h2 = h + _B_ref(_layernorm(h, axis=-1), B_w1, B_b1, B_w2, B_b2)
    return h2
```

```python
import re

REG_RE = re.compile(r'\b([vas])(\d+)\b|\b([vas])\[(\d+):(\d+)\]')

def regs_of(tok):
    out = set()
    t = tok.strip()
    for m in REG_RE.finditer(t):
        if m.group(1):
            out.add((m.group(1), int(m.group(2))))
        else:
            for i in range(int(m.group(4)), int(m.group(5)) + 1):
                out.add((m.group(3), i))
    if re.search(r'\bvcc\b', t): out |= {('vcc', 0)}
    if re.search(r'\bexec\b', t): out |= {('exec', 0)}
    if re.search(r'\bm0\b', t): out |= {('m0', 0)}
    return out

TRANS = ('v_exp_f32', 'v_log_f32', 'v_rcp_f32', 'v_rsq_f32', 'v_sqrt_f32', 'v_sin_f32', 'v_cos_f32', 'v_rcp_iflag_f32')

class Ins:
    __slots__ = ('text', 'mn', 'kind', 'w', 'r', 'srcc', 'passes', 'idx', 'wide_store_data', 'is_trans', 'dpp', 'lds_dma', 'vaddr')

class Asm:
    def __init__(self):
        self.lines = []
        self.hist = []
        self.pos = 0
        self.nnop = 0
        self.auto = True

    def raw(self, s):
        self.lines.append(s)

    def comment(self, s):
        self.lines.append('; ' + s)

    def label(self, name):
        self.lines.append(name + ':')

    def flush_hazards(self, n=12):
        self._nop(n)
        self.hist = []

    def _nop(self, n):
        while n > 0:
            k = min(n, 16)
            self.lines.append(f'  s_nop {k-1}')
            self.pos += k
            self.nnop += 1
            n -= k

    def parse(self, text):
        ins = Ins(); ins.text = text
        t = text.split(';')[0].strip()
        parts = t.split(None, 1)
        mn = parts[0]; ins.mn = mn
        rest = parts[1] if len(parts) > 1 else ''
        ops = [o.strip() for o in re.split(r',(?![^\[]*\])', rest)] if rest else []
        ins.w = set(); ins.r = set(); ins.srcc = set(); ins.passes = 0; ins.wide_store_data = set()
        ins.is_trans = False; ins.dpp = ('dpp' in mn) or ('row_' in rest) or ('quad_perm' in rest); ins.lds_dma = False
        def R(o): return regs_of(o.split(' ')[0] if not o.startswith(('v[', 's[', 'a[')) else o.split(' ')[0])
        if mn.startswith('v_mfma'):
            ins.kind = 'mfma'
            ins.passes = 8 if '32x32' in mn else 4
            ins.w = R(ops[0]); ins.r = R(ops[1]) | R(ops[2]) | R(ops[3]); ins.srcc = R(ops[3])
        elif mn.startswith('v_'):
            ins.kind = 'valu'
            ins.is_trans = mn.replace('_e32', '').replace('_e64', '') in TRANS
            if mn.startswith('v_cmpx'):
                ins.w = {('exec', 0)} | R(ops[0]); srcs = ops[1:]
            elif mn.startswith('v_cmp'):
                ins.w = R(ops[0]); srcs = ops[1:]
            elif mn.startswith(('v_add_co', 'v_sub_co', 'v_addc_co', 'v_subb_co', 'v_subrev_co', 'v_div_scale', 'v_mad_u64_u32')):
                ins.w = R(ops[0]) | R(ops[1]); srcs = ops[2:]
            elif mn.startswith(('v_permlane32_swap', 'v_permlane16_swap', 'v_swap')):
                ins.w = R(ops[0]) | R(ops[1]); srcs = ops
            elif mn.startswith(('v_fmac', 'v_dot2c', 'v_pk_fmac')):
                ins.w = R(ops[0]); srcs = ops
            elif mn.startswith('v_writelane'):
                ins.w = R(ops[0]); srcs = ops
            elif mn.startswith('v_nop'):
                srcs = []
            else:
                ins.w = R(ops[0]); srcs = ops[1:]
            for o in srcs: ins.r |= R(o)
            if mn.startswith('v_cndmask') and len(ops) == 3: ins.r |= {('vcc', 0)}
            if ins.dpp and mn.startswith(('v_mov_b32_dpp', 'v_add_f32_dpp', 'v_max', 'v_min')): pass
        elif mn.startswith(('buffer_', 'global_', 'flat_')):
            ins.kind = 'vmem'
            if ' lds' in (' ' + rest) and 'load' in mn or 'load_lds' in mn:
                ins.lds_dma = True
                for o in ops: ins.r |= R(o)
                ins.r |= {('m0', 0)}
            elif 'store' in mn:
                if mn.startswith('buffer_'):
                    data = R(ops[0]); ins.r |= data
                    for o in ops[1:]: ins.r |= R(o)
                else:
                    data = R(ops[1]); ins.r |= data | R(ops[0])
                    for o in ops[2:]: ins.r |= R(o)
                if 'x4' in mn or 'x3' in mn: ins.wide_store_data = data
            elif 'atomic' in mn:
                ret = ' sc0' in (' ' + rest)
                if mn.startswith('buffer_'):
                    for o in ops: ins.r |= R(o)
                    if ret: ins.w = R(ops[0])
                else:
                    if ret:
                        ins.w = R(ops[0])
                        for o in ops[1:]: ins.r |= R(o)
                    else:
                        for o in ops: ins.r |= R(o)
            elif mn in ('buffer_inv', 'buffer_wbl2'):
                pass
            else:
                ins.w = R(ops[0])
                for o in ops[1:]: ins.r |= R(o)
        elif mn.startswith('ds_'):
            ins.kind = 'ds'
            if mn.startswith(('ds_read', 'ds_bpermute', 'ds_permute', 'ds_swizzle')):
                ins.w = R(ops[0])
                for o in ops[1:]: ins.r |= R(o)
            else:
                for o in ops: ins.r |= R(o)
        elif mn.startswith('s_'):
            ins.kind = 'salu'
            if mn.startswith(('s_cmp', 's_bitcmp', 's_waitcnt', 's_barrier', 's_nop', 's_branch', 's_cbranch', 's_endpgm', 's_sleep', 's_setprio')):
                for o in ops: ins.r |= R(o)
                if mn.startswith('s_cbranch_vcc'): ins.r |= {('vcc', 0)}
                if mn.startswith('s_cbranch_exec'): ins.r |= {('exec', 0)}
            elif mn.startswith(('s_load', 's_memtime', 's_memrealtime', 's_getreg', 's_buffer_load')):
                ins.kind = 'smem'
                ins.w = R(ops[0])
                for o in ops[1:]: ins.r |= R(o)
            elif 'saveexec' in mn:
                ins.w = R(ops[0]) | {('exec', 0)}
                for o in ops[1:]: ins.r |= R(o)
                ins.r |= {('exec', 0)}
            else:
                ins.w = R(ops[0])
                for o in ops[1:]: ins.r |= R(o)
        else:
            raise ValueError('unknown instr ' + text)
        return ins

    def need(self, p, c):
        n = 0
        vw = {x for x in p.w if x[0] in 'va'}
        sw = {x for x in p.w if x[0] in ('s', 'vcc')}
        if p.kind == 'valu':
            if c.kind == 'mfma' and (vw & c.r): n = max(n, 2)
            if p.is_trans and c.kind in ('valu',) and (vw & c.r) and not c.is_trans: n = max(n, 1)
            if p.is_trans and c.kind in ('valu',) and (vw & c.r): n = max(n, 1)
            if c.kind == 'valu' and (sw & c.r):
                n = max(n, 4 if c.mn.startswith(('v_readlane', 'v_writelane')) else 2)
            if c.kind == 'vmem' and (sw & c.r): n = max(n, 5)
            if c.kind in ('salu', 'smem') and (sw & c.r): n = max(n, 2)
            if c.kind == 'valu' and c.mn.startswith(('v_readlane', 'v_readfirstlane')) and (vw & c.r): n = max(n, 1)
            if c.kind == 'valu' and c.mn.startswith('v_permlane') and (vw & c.r): n = max(n, 2)
            if c.kind == 'valu' and c.dpp and (vw & c.r): n = max(n, 2)
            if ('exec', 0) in p.w:
                if c.kind == 'mfma': n = max(n, 4)
                if c.kind == 'valu' and c.dpp: n = max(n, 5)
                if c.kind == 'valu' and c.mn.startswith(('v_readlane', 'v_readfirstlane', 'v_writelane', 'v_permlane')): n = max(n, 4)
        if p.kind == 'mfma':
            P = p.passes
            long = {4: 8, 8: 12}[P]
            if c.kind == 'mfma':
                ab = c.r - c.srcc
                if p.w & ab: n = max(n, long)
                elif p.w & c.srcc:
                    if p.w == c.srcc and c.passes == P: pass
                    else: n = max(n, {4: 6, 8: 10}[P])
                if (p.w & c.w) and not (p.w == c.srcc): n = max(n, long)
            else:
                if (p.w & c.r) or (p.w & c.w): n = max(n, long)
                if c.kind == 'valu' and (p.srcc & c.w): n = max(n, {4: 3, 8: 7}[P])
        if p.kind == 'salu' and ('m0', 0) in p.w and c.lds_dma: n = max(n, 1)
        if p.wide_store_data and (p.wide_store_data & c.w):
            n = max(n, 2)
        if p.kind == 'salu' and ('exec', 0) in p.w and c.kind == 'valu' and c.dpp: n = max(n, 1)
        return n

    def __call__(self, text):
        for line in text.strip().split('\n'):
            line = line.strip()
            if not line or line.startswith(';'):
                if line: self.lines.append(line)
                continue
            if line.endswith(':'):
                self.label(line[:-1]); continue
            ins = self.parse(line)
            if self.auto:
                req = 0
                for (p, ppos) in self.hist:
                    d = self.pos - ppos - 1
                    nd = self.need(p, ins)
                    if nd > d: req = max(req, nd - d)
                if req: self._nop(req)
            self.lines.append('  ' + line)
            k = 1
            if ins.mn == 's_nop':
                k = int(line.split()[1]) + 1
            self.hist.append((ins, self.pos + k - 1))
            self.pos += k
            self.hist = [(p, q) for (p, q) in self.hist if self.pos - q <= 14]

    def text(self):
        return '\n'.join(self.lines) + '\n'
```

```python
import sys, os, struct
sys.path.insert(0, os.path.dirname(os.path.abspath(__file__)))
from asmlib import Asm

NAME = "sequential_preLN__linear_attn_block__mixer_channel_mlp__prompt"
def f32(x): return "0x%08x" % struct.unpack("<I", struct.pack("<f", x))[0]

F_XCC = 0x0000
F_S1  = 0x1000
F_S2  = 0x2000
F_S3  = 0x3000
F_S4  = 0x4000
F_S5  = 0x5000
F_RPO = 0x6000
F_RPU = 0x6108
PQ    = 0x100000
PK    = 0x400000
VV    = 0x700000
KVP   = 0xA00000
OB    = 0xB00000
HB    = 0xE00000
ST2   = 0x1100000
HH    = 0x1200000
WOF   = 0x1800000
W1F   = 0x1900000
W2F   = 0x1C00000
CS1P  = 0x1F00000
WS_SIZE = 0x10000000
K1024 = 1024

sX, sJ, sRB, sCT, sW, sEP, sMODE, sXCC = 4, 5, 6, 7, 8, 9, 10, 11
T0, T1, T2, T3 = 12, 13, 14, 15
pX, pWQKV, pWO, pBX, pW1, pB1, pW2, pB2 = 16, 18, 20, 22, 24, 26, 28, 30
pOUT, pDBG, pWS = 32, 34, 36
rX, rWQKV, rWS, rOUT, rDBG, rW, rB = 40, 44, 48, 52, 56, 60, 64
SYNCW = 7

def srd(r): return f"s[{r}:{r+3}]"

class Gen:
    def __init__(self, stop_after=None, gmode=False, timing=False):
        self.a = Asm()
        self.stop_after = stop_after
        self.gmode = gmode
        self.timing = timing
        self.uid = 0
        self.code_pf = True

    def lab(self, base):
        self.uid += 1
        return f"L_{base}_{self.uid}"

    def hstore(self, text):
        a = self.a
        if self.gmode:
            a(text + " sc1"); return
        l1, l2 = self.lab("hs"), self.lab("hs")
        a(f"s_cmp_eq_u32 s{sMODE}, 0")
        a(f"s_cbranch_scc1 {l1}")
        a(text)
        a(f"s_branch {l2}")
        a.label(l1)
        a(text + " sc1")
        a.label(l2)

    def stamp(self, idx):
        if not self.timing: return
        a = self.a
        a("s_memtime s[100:101]")
        a("s_waitcnt lgkmcnt(0)")
        a(f"v_writelane_b32 v255, s100, {idx}")

    def dump_stamps(self):
        if not self.timing: return
        a = self.a
        lab, l2 = self.lab("nostamp"), self.lab("nostamp")
        a("s_mov_b32 s100, 0x10000")
        a(f"s_cmp_eq_u32 s{sW}, 0")
        a(f"s_cbranch_scc1 {l2}")
        a("s_mov_b32 s100, 0x20000")
        a(f"s_cmp_lg_u32 s{sW}, {SYNCW}")
        a(f"s_cbranch_scc1 {lab}")
        a.label(l2)
        a("s_lshl_b32 s101, s2, 8")
        a("s_add_u32 s100, s100, s101")
        a("s_mov_b64 exec, -1")
        a("v_lshlrev_b32 v254, 2, v1")
        a(f"buffer_store_dword v255, v254, {srd(rWS)}, s100 offen")
        a.label(lab)

    def mk_srd(self, r, p, size):
        a = self.a
        a(f"s_mov_b32 s{r}, s{p}")
        a(f"s_mov_b32 s{r+1}, s{p+1}")
        a(f"s_mov_b32 s{r+2}, {size}")
        a(f"s_mov_b32 s{r+3}, 0x20000")

    def prologue(self):
        a = self.a
        a("s_cmp_ge_u32 s2, 256")
        a("s_cbranch_scc1 L_end")
        a("s_load_dwordx16 s[16:31], s[0:1], 0")
        a("s_load_dwordx4 s[32:35], s[0:1], 64")
        a("s_load_dwordx2 s[36:37], s[0:1], 80")
        a(f"s_and_b32 s{sX}, s2, 7")
        a(f"s_lshr_b32 s{sJ}, s2, 3")
        a(f"s_lshr_b32 s{sRB}, s{sJ}, 4")
        a(f"s_and_b32 s{sCT}, s{sJ}, 15")
        a(f"s_getreg_b32 s{sXCC}, hwreg(HW_REG_XCC_ID)")
        a(f"s_and_b32 s{sXCC}, s{sXCC}, 7")
        a(f"s_mov_b32 s{sMODE}, 0")
        a(f"s_mov_b32 s{sEP}, 0")
        a("v_and_b32 v1, 63, v0")
        a("v_lshrrev_b32 v5, 6, v0")
        a("v_lshlrev_b32 v2, 4, v1")
        a(f"v_readfirstlane_b32 s{sW}, v5")
        a("v_lshrrev_b32 v3, 4, v1")
        a("v_and_b32 v4, 15, v1")
        if self.timing: a("v_mov_b32 v255, 0")
        self.stamp(0)
        if self.code_pf:
            lab = self.lab("cpf")
            a("s_getpc_b64 s[38:39]")
            a(f"s_lshl_b32 s3, s{sJ}, 3")
            a(f"s_add_u32 s3, s3, s{sW}")
            a(f"s_cmp_ge_u32 s3, ((L_end-{NAME}_kernel)>>10)")
            a(f"s_cbranch_scc1 {lab}")
            a("s_lshl_b32 s3, s3, 10")
            a("v_add_u32 v6, s3, v2")
            a("global_load_dwordx4 v[236:239], v6, s[38:39]")
            a.label(lab)
        a("s_waitcnt lgkmcnt(0)")
        self.mk_srd(rX, pX, 2048 * 1280)
        self.mk_srd(rWQKV, pWQKV, 640 * 3840)
        self.mk_srd(rWS, pWS, WS_SIZE)
        self.mk_srd(rOUT, pOUT, 2048 * 1280)
        self.mk_srd(rDBG, pDBG, 256)

    def spin_guard(self):
        a = self.a
        a("s_add_u32 s99, s99, 1")
        a("s_cmp_gt_u32 s99, 0x40000")
        a("s_cbranch_scc1 L_end")

    def make_epoch(self):
        a = self.a
        l0 = self.lab("ep")
        a(f"s_xor_b32 s{T0}, s{sW}, {SYNCW}")
        a(f"s_or_b32 s{T0}, s2, s{T0}")
        a(f"s_cmp_lg_u32 s{T0}, 0")
        a(f"s_cbranch_scc1 {l0}")
        a("s_memrealtime s[12:13]")
        a("s_waitcnt lgkmcnt(0)")
        a(f"s_and_b32 s{T0}, s{T0}, 0xfffffff0")
        a(f"s_or_b32 s{T0}, s{T0}, 8")
        a(f"v_mov_b32 v10, s{T0}")
        a("v_mov_b32 v11, 0")
        a(f"buffer_store_dword v10, v11, {srd(rDBG)}, 0 offen sc1")
        a.label(l0)

    def epoch_issue(self):
        a = self.a
        lab = self.lab("ei")
        a(f"s_cmp_lg_u32 s{sW}, {SYNCW}")
        a(f"s_cbranch_scc1 {lab}")
        a("v_mov_b32 v252, 0")
        a(f"buffer_load_dword v249, v252, {srd(rDBG)}, 0 offen sc1")
        a.label(lab)

    def epoch_take(self, blocking):
        a = self.a
        lab, l1, l2 = self.lab("et"), self.lab("et"), self.lab("et")
        a(f"s_cmp_lg_u32 s{sW}, {SYNCW}")
        a(f"s_cbranch_scc1 {lab}")
        a(f"s_cmp_lg_u32 s{sEP}, 0")
        a(f"s_cbranch_scc1 {lab}")
        a(f"v_readfirstlane_b32 s{sEP}, v249")
        if blocking:
            a("s_mov_b32 s99, 0")
            a.label(l1)
            a(f"s_cmp_lg_u32 s{sEP}, 0")
            a(f"s_cbranch_scc1 {l2}")
            self.spin_guard()
            a("v_mov_b32 v252, 0")
            a(f"buffer_load_dword v249, v252, {srd(rDBG)}, 0 offen sc1")
            a("s_waitcnt vmcnt(0)")
            a(f"v_readfirstlane_b32 s{sEP}, v249")
            a(f"s_branch {l1}")
            a.label(l2)
        else:
            a(f"s_cmp_eq_u32 s{sEP}, 0")
            a(f"s_cbranch_scc1 {lab}")
        a(f"s_lshl_b32 s{T0}, s{sX}, 7")
        a(f"s_lshl_b32 s{T1}, s{sJ}, 2")
        a(f"s_add_u32 s{T0}, s{T0}, s{T1}")
        if F_XCC: a(f"s_add_u32 s{T0}, s{T0}, {F_XCC}")
        self.flag_store(T0, glob=True)
        a.label(lab)

    def poll(self, off_sgpr, n):
        a = self.a
        lab = self.lab("wf")
        a(f"v_min_u32 v252, {n-1}, v1")
        a("v_lshlrev_b32 v252, 2, v252")
        a("s_mov_b32 s99, 0")
        a.label(lab)
        self.spin_guard()
        a(f"buffer_load_dword v253, v252, {srd(rWS)}, s{off_sgpr} offen sc1")
        a("s_waitcnt vmcnt(0)")
        a("v_and_b32 v254, -8, v253")
        a(f"v_cmp_ne_u32 vcc, s{sEP}, v254")
        a("s_nop 4")
        a(f"s_cbranch_vccnz {lab}")

    def poll_multi(self, sets):
        a = self.a
        lab = self.lab("wf")
        regs = [(252, 253), (250, 251), (248, 249)]
        for (off, n), (ra, rd) in zip(sets, regs):
            a(f"v_min_u32 v{ra}, {n-1}, v1")
            a(f"v_lshlrev_b32 v{ra}, 2, v{ra}")
        a("s_mov_b32 s99, 0")
        a.label(lab)
        self.spin_guard()
        for (off, n), (ra, rd) in zip(sets, regs):
            a(f"buffer_load_dword v{rd}, v{ra}, {srd(rWS)}, s{off} offen sc1")
        a("s_waitcnt vmcnt(0)")
        for k, ((off, n), (ra, rd)) in enumerate(zip(sets, regs)):
            a(f"v_and_b32 v254, -8, v{rd}")
            a(f"v_cmp_ne_u32 {'vcc' if k == 0 else 's[12:13]'}, s{sEP}, v254")
            if k: a("s_or_b64 vcc, vcc, s[12:13]")
        a("s_nop 4")
        a(f"s_cbranch_vccnz {lab}")

    def poll_s2_rp(self, off_s2, n=8):
        a = self.a
        lab = self.lab("wf")
        a(f"v_min_u32 v252, {n-1}, v1")
        a("v_lshlrev_b32 v252, 2, v252")
        a("v_min_u32 v250, 59, v1")
        a("v_lshlrev_b32 v250, 4, v250")
        a(f"s_mov_b32 s14, {F_RPU + 50*4}")
        a("s_mov_b32 s99, 0")
        a.label(lab)
        self.spin_guard()
        a(f"buffer_load_dword v253, v252, {srd(rWS)}, s{off_s2} offen sc1")
        a(f"buffer_load_dwordx4 v[244:247], v250, {srd(rWS)}, s14 offen sc1")
        a("s_waitcnt vmcnt(0)")
        a("v_and_b32 v254, -8, v253")
        a(f"v_cmp_ne_u32 vcc, s{sEP}, v254")
        for r in range(4):
            a(f"v_and_b32 v254, -8, v{244+r}")
            a(f"v_cmp_ne_u32 s[12:13], s{sEP}, v254")
            a("s_or_b64 vcc, vcc, s[12:13]")
        a("s_nop 4")
        a(f"s_cbranch_vccnz {lab}")

    def poll_s1_rp(self, off_s1):
        a = self.a
        lab = self.lab("wf")
        a("v_min_u32 v252, 31, v1")
        a("v_lshlrev_b32 v252, 2, v252")
        a("v_min_u32 v250, 59, v1")
        a("v_lshlrev_b32 v250, 4, v250")
        a("v_min_u32 v249, 15, v1")
        a("v_lshlrev_b32 v249, 2, v249")
        a(f"s_mov_b32 s14, {F_RPU + 50*4}")
        a(f"s_mov_b32 s15, {F_RPO}")
        a("s_mov_b32 s99, 0")
        a.label(lab)
        self.spin_guard()
        a(f"buffer_load_dword v253, v252, {srd(rWS)}, s{off_s1} offen sc1")
        a(f"buffer_load_dwordx4 v[244:247], v250, {srd(rWS)}, s14 offen sc1")
        a(f"buffer_load_dword v251, v249, {srd(rWS)}, s15 offen sc1")
        a("s_waitcnt vmcnt(0)")
        a("v_and_b32 v254, -8, v253")
        a(f"v_cmp_ne_u32 vcc, s{sEP}, v254")
        for r in (244, 245, 246, 247, 251):
            a(f"v_and_b32 v254, -8, v{r}")
            a(f"v_cmp_ne_u32 s[12:13], s{sEP}, v254")
            a("s_or_b64 vcc, vcc, s[12:13]")
        a("s_nop 4")
        a(f"s_cbranch_vccnz {lab}")

    def wait(self, *flagsets, pre=None):
        a = self.a
        lab = self.lab("w")
        a(f"s_cmp_lg_u32 s{sW}, {SYNCW}")
        a(f"s_cbranch_scc1 {lab}")
        if len(flagsets) == 1: self.poll(*flagsets[0])
        else: self.poll_multi(flagsets)
        a.label(lab)
        if pre: a(pre)
        a("s_barrier")

    def prio_young(self, p=1):
        a = self.a
        lab = self.lab("pr")
        a(f"s_cmp_lt_u32 s{sW}, 4")
        a(f"s_cbranch_scc1 {lab}")
        a(f"s_setprio {p}")
        a.label(lab)

    def flag_store(self, off_sgpr, glob=False):
        a = self.a
        lab = self.lab("sig")
        a(f"s_cmp_lg_u32 s{sW}, {SYNCW}")
        a(f"s_cbranch_scc1 {lab}")
        a(f"s_or_b32 s{T3}, s{sEP}, s{sXCC}")
        a(f"v_mov_b32 v253, s{T3}")
        a("v_mov_b32 v252, 0")
        a("s_mov_b64 exec, 1")
        if glob: a(f"buffer_store_dword v253, v252, {srd(rWS)}, s{off_sgpr} offen sc1")
        else: self.hstore(f"buffer_store_dword v253, v252, {srd(rWS)}, s{off_sgpr} offen")
        a("s_mov_b64 exec, -1")
        a.label(lab)

    def signal(self, off_sgpr, glob=False, pre="s_waitcnt vmcnt(0)"):
        a = self.a
        if pre: a(pre)
        a("s_barrier")
        self.flag_store(off_sgpr, glob)

    def vq_reset(self): self.vq = []
    def vq_add(self, tag, n_sync=1, n_other=1): self.vq.append((tag, n_sync, n_other))
    def vq_wait(self, tag, lgkm=True):
        a = self.a
        idx = max(i for i, t in enumerate(self.vq) if t[0] == tag)
        ns = sum(t[1] for t in self.vq[idx+1:]); no = sum(t[2] for t in self.vq[idx+1:])
        ns, no = min(ns, 63), min(no, 63)
        lg = " lgkmcnt(0)" if lgkm else ""
        if ns == no:
            a(f"s_waitcnt vmcnt({ns}){lg}")
        else:
            l1, l2 = self.lab("vw"), self.lab("vw")
            a(f"s_cmp_eq_u32 s{sW}, {SYNCW}")
            a(f"s_cbranch_scc1 {l1}")
            a(f"s_waitcnt vmcnt({no}){lg}")
            a(f"s_branch {l2}")
            a.label(l1)
            a(f"s_waitcnt vmcnt({ns}){lg}")
            a.label(l2)

    def bulk_dma(self, src_sgpr, src_off, lds_base, nblk, tmp=(T0, T1), w0=0, nw=7):
        a = self.a
        lab = self.lab("bd")
        a(f"s_sub_u32 s{tmp[0]}, s{sW}, {w0}")
        a(f"s_cmp_ge_u32 s{tmp[0]}, {nw}")
        a(f"s_cbranch_scc1 {lab}")
        a(f"s_mov_b32 s98, s{tmp[0]}")
        a(f"s_lshl_b32 s{tmp[0]}, s{tmp[0]}, 10")
        a(f"s_add_u32 s{tmp[1]}, s{tmp[0]}, s{src_sgpr}")
        if src_off: a(f"s_add_u32 s{tmp[1]}, s{tmp[1]}, {src_off}")
        nit = (nblk + nw - 1) // nw
        for k in range(nit):
            l2 = None
            if nw*k + nw - 1 >= nblk:
                l2 = self.lab("bd")
                a(f"s_cmp_ge_u32 s98, {nblk - nw*k}")
                a(f"s_cbranch_scc1 {l2}")
            a(f"s_add_u32 m0, s{tmp[0]}, {lds_base + nw*k*1024}")
            a(f"buffer_load_dwordx4 v2, {srd(rWS)}, s{tmp[1]} offen sc1 lds")
            if k + 1 < nit: a(f"s_add_u32 s{tmp[1]}, s{tmp[1]}, {nw*1024}")
            if l2: a.label(l2)
        a.label(lab)
        if getattr(self, "vq", None) is not None:
            self.vq_add("bulk", 0, (nblk // nw) if (w0 == 0 and nw == 7) else 0)
        return nit
    def sdiv(self, dst, src, d):
        self.a(f"s_mul_hi_u32 s{dst}, s{src}, {(2**32 + d - 1)//d}")
    def sdivmod(self, q, r, src, d):
        self.sdiv(q, src, d)
        self.a(f"s_mul_i32 s{r}, s{q}, {d}")
        self.a(f"s_sub_u32 s{r}, s{src}, s{r}")

    def p1(self):
        a = self.a
        NST = 10; NSLOT = 4; SLOT = 32768
        sCB0, sCB1 = 68, 69
        self.make_epoch()
        a(f"s_lshl_b32 s{T0}, s{sX}, 8")
        a(f"s_lshl_b32 s{T1}, s{sJ}, 3")
        a(f"s_add_u32 s{T0}, s{T0}, s{T1}")
        a(f"s_add_u32 s{T0}, s{T0}, s{sW}")
        a(f"s_mul_i32 s{T0}, s{T0}, 1280")
        a(f"buffer_load_dwordx4 v[240:243], v2, {srd(rX)}, s{T0} offen")
        a("v_lshlrev_b32 v10, 4, v4")
        a(f"buffer_load_dwordx4 v[244:247], v10, {srd(rX)}, s{T0} offen offset:1024")
        a(f"s_cmp_eq_u32 s{sCT}, 15")
        a("s_cbranch_scc1 L_p1_spare")
        a(f"s_lshl_b32 s{T0}, s{sCT}, 8")
        a(f"s_add_u32 s{T1}, s{T0}, 128")
        a(f"s_sub_u32 s{T2}, s{sCT}, 5")
        a(f"s_lshl_b32 s{T2}, s{T2}, 7")
        a(f"s_add_u32 s{T3}, s{T2}, 2560")
        a(f"s_add_u32 s{T2}, s{T2}, 1280")
        a(f"s_cmp_lt_u32 s{sCT}, 5")
        a(f"s_cselect_b32 s{sCB0}, s{T0}, s{T2}")
        a(f"s_cselect_b32 s{sCB1}, s{T1}, s{T3}")
        sWR, sWC = 81, 82
        a(f"s_lshr_b32 s{sWR}, s{sW}, 1")
        a(f"s_and_b32 s{sWC}, s{sW}, 1")
        vOA, vOB = 6, 7
        a("v_lshrrev_b32 v10, 3, v1")
        a("v_and_b32 v11, 7, v1")
        a("v_xor_b32 v11, v11, v10")
        a("v_mul_u32_u24 v10, 1280, v10")
        a(f"v_lshl_add_u32 v{vOA}, v11, 4, v10")
        a(f"s_lshl_b32 s{T0}, s{sWC}, 3")
        a("v_lshlrev_b32 v10, 1, v3")
        a(f"v_or_b32 v10, s{T0}, v10")
        a("v_xor_b32 v10, v10, v4")
        a("v_and_b32 v11, 7, v10")
        a("v_lshlrev_b32 v11, 4, v11")
        a(f"v_mov_b32 v12, s{sCB0}")
        a(f"v_mov_b32 v13, s{sCB1}")
        a("v_cmp_gt_u32 vcc, 8, v10")
        a("v_cndmask_b32 v12, v13, v12, vcc")
        a("v_add_u32 v11, v11, v12")
        a("v_mul_u32_u24 v12, 3840, v3")
        a(f"v_add_u32 v{vOB}, v11, v12")
        sA = [72, 73]; sB = [76, 77]; sM = 80
        a(f"s_lshl_b32 s{T0}, s{sX}, 8")
        a(f"s_lshl_b32 s{T1}, s{sRB}, 7")
        a(f"s_add_u32 s{T0}, s{T0}, s{T1}")
        a(f"s_lshl_b32 s{T1}, s{sW}, 4")
        a(f"s_add_u32 s{T1}, s{T1}, s{T0}")
        a(f"s_mul_i32 s{sA[0]}, s{T1}, 1280")
        a(f"s_add_u32 s{sA[1]}, s{sA[0]}, 10240")
        a(f"s_mul_i32 s{sB[0]}, s{sW}, {8*3840}")
        a(f"s_add_u32 s{sB[1]}, s{sB[0]}, {4*3840}")
        a(f"s_lshl_b32 s{sM}, s{sW}, 11")
        def dma_list(st):
            base = (st % NSLOT) * SLOT
            out = []
            for q in range(2):
                out.append([f"s_add_u32 m0, s{sM}, {base + 16384 + q*1024}",
                            f"buffer_load_dwordx4 v{vOB}, {srd(rWQKV)}, s{sB[q]} offen lds",
                            f"s_add_u32 s{sB[q]}, s{sB[q]}, {64*3840}"])
                out.append([f"s_add_u32 m0, s{sM}, {base + q*1024}",
                            f"buffer_load_dwordx4 v{vOA}, {srd(rX)}, s{sA[q]} offen lds",
                            f"s_add_u32 s{sA[q]}, s{sA[q]}, 128"])
            return out
        self.stamp(1)
        a("s_setprio 3")
        for st in range(2):
            for d in dma_list(st):
                for x in d: a(x)
            if st == 0: a("s_setprio 0")
        self.rp_setup()
        a(f"s_mul_i32 s96, s{sX}, 30")
        a(f"s_add_u32 s96, s96, s{sJ}")
        a(f"s_sub_u32 s96, s96, s{sRB}")
        a("s_add_u32 s96, s96, 50")
        a(f"s_mov_b32 s98, {128*1024}")
        self.rp_issue(96, 98, 0)
        self.stamp(2)
        vAa = [[[16 + (ks*2 + i)*3 + b for b in range(3)] for i in range(2)] for ks in range(2)]
        vBa = [[28 + t*3 + b for b in range(3)] for t in range(4)]
        a(f"s_lshl_b32 s{T0}, s{sWR}, 12")
        a(f"s_lshl_b32 s{T1}, s{sWC}, 11")
        a(f"s_add_u32 s{T2}, s{T0}, s{T1}")
        a(f"s_sub_u32 s{T3}, s{T0}, s{T1}")
        a(f"s_add_u32 s{T3}, s{T3}, 2048")
        a("v_and_b32 v10, 7, v4")
        for ks in range(2):
            a(f"v_or_b32 v11, {4*ks}, v3" if ks else "v_mov_b32 v11, v3")
            a("v_xor_b32 v11, v11, v10")
            a("v_lshlrev_b32 v11, 4, v11")
            a("v_lshl_add_u32 v11, v4, 7, v11")
            for i, sreg in ((0, T2), (1, T3)):
                a(f"v_add_u32 v{vAa[ks][i][0]}, s{sreg}, v11")
                a(f"v_add_u32 v{vAa[ks][i][1]}, 0x10000, v{vAa[ks][i][0]}")
                a(f"v_add_u32 v{vAa[ks][i][2]}, 0x20000, v{vAa[ks][i][0]}")
        a("v_lshrrev_b32 v10, 2, v4")
        a("v_and_b32 v11, 3, v4")
        a("v_and_b32 v12, 1, v3")
        a("v_lshlrev_b32 v12, 3, v12")
        a("v_lshl_add_u32 v12, v10, 1, v12")
        a("v_lshrrev_b32 v13, 1, v11")
        a("v_xor_b32 v12, v12, v13")
        a("v_lshl_add_u32 v13, v3, 3, v10")
        a("v_lshlrev_b32 v13, 8, v13")
        a("v_and_b32 v14, 1, v11")
        a("v_lshl_add_u32 v13, v14, 3, v13")
        a("v_add_u32 v13, 16384, v13")
        ONES = 40
        for i in range(4): a(f"v_mov_b32 v{ONES+i}, 0x3f803f80")
        FR = 44
        ACC = 96; GRAM = 128; SUM = 132; CSUM = 136
        def fa(buf, i): r = FR + buf*24 + i*4; return f"v[{r}:{r+3}]"
        def fb(buf, t): r = FR + buf*24 + 8 + t*4; return f"v[{r}:{r+3}]"
        def reads(u):
            st, ks = u >> 1, u & 1
            off = (st % NSLOT) * SLOT
            b, lo = off >> 16, off & 0xffff
            buf = u & 1
            out = []
            for i in range(2):
                out.append(f"ds_read_b128 {fa(buf, i)}, v{vAa[ks][i][b]} offset:{lo}")
            for t in range(4):
                for hf in range(2):
                    r0 = FR + buf*24 + 8 + t*4 + hf*2
                    out.append(f"ds_read_b64_tr_b16 v[{r0}:{r0+1}], v{vBa[t][b]} offset:{lo + (32*ks + 4*hf)*256}")
            return out
        ones = f"v[{ONES}:{ONES+3}]"
        for isq in (True, False):
            if isq:
                a(f"s_cmp_lt_u32 s{sCT}, 5")
                a("s_cbranch_scc0 L_p1_kv")
            else:
                a.label("L_p1_kv")
                a.flush_hazards(4)
            for t in range(4):
                if isq:
                    a(f"s_xor_b32 s{T0}, s{sWR}, {t}")
                    a(f"s_lshl_b32 s{T1}, s{sWC}, 2")
                    a(f"s_add_u32 s{T0}, s{T0}, s{T1}")
                else:
                    a(f"s_and_b32 s{T0}, s{sWR}, 1")
                    a(f"s_xor_b32 s{T0}, s{T0}, {t & 1}")
                    a(f"s_lshl_b32 s{T1}, s{sWC}, 1")
                    a(f"s_add_u32 s{T0}, s{T0}, s{T1}")
                    if t & 2: a(f"s_add_u32 s{T0}, s{T0}, 4")
                a(f"s_mov_b32 s{84+t}, s{T0}")
                a(f"s_lshl_b32 s{T0}, s{T0}, 1")
                a(f"v_xor_b32 v14, s{T0}, v12")
                a(f"v_lshl_add_u32 v{vBa[t][0]}, v14, 4, v13")
                a(f"v_add_u32 v{vBa[t][1]}, 0x10000, v{vBa[t][0]}")
                a(f"v_add_u32 v{vBa[t][2]}, 0x20000, v{vBa[t][0]}")
            a(f"s_waitcnt vmcnt(6)")
            a("s_barrier")
            self.stamp(3)
            self.epoch_issue()
            for x in reads(0): a(x)
            for u in range(2*NST):
                st, ks = u >> 1, u & 1
                buf = u & 1; first = (u == 0)
                def C(d): return "0" if first else f"v[{d}:{d+3}]"
                a("s_waitcnt lgkmcnt(0)")
                if ks == 1 and st + 1 < NST:
                    issued = min(NST, st + 3)
                    a(f"s_waitcnt vmcnt({4*(issued - (st + 2))})")
                    a("s_barrier")
                if u == 3:
                    self.epoch_take(blocking=False)
                if u == 12:
                    self.rp_process(128*1024, 0)
                if u == 17:
                    self.epoch_take(blocking=True)
                    a("s_lshl_b32 s97, s96, 2")
                    a(f"s_add_u32 s97, s97, {F_RPU}")
                    self.flag_store(97, glob=True)
                if u in (2, 6, 10, 14, 18): self.stamp(4 + (u - 2)//4)
                dm = []
                if u == 0: dm = dma_list(2)
                else:
                    sw = st if ks == 1 else st - 1
                    if sw + 3 < NST:
                        dl = dma_list(sw + 3)
                        dm = dl[:2] if ks == 1 else dl[2:]
                rd = reads(u + 1) if u + 1 < 2*NST else []
                mf = []
                for i in range(2):
                    for t in range(4):
                        d = ACC + (i*4 + t)*4
                        if isq: mf.append(f"v_mfma_f32_16x16x32_bf16 v[{d}:{d+3}], {fb(buf,t)}, {fa(buf,i)}, {C(d)}")
                        else:   mf.append(f"v_mfma_f32_16x16x32_bf16 v[{d}:{d+3}], {fa(buf,i)}, {fb(buf,t)}, {C(d)}")
                mf.append(f"v_mfma_f32_16x16x32_bf16 v[{GRAM}:{GRAM+3}], {fa(buf,0)}, {fa(buf,0)}, {C(GRAM)}")
                mf.append(f"v_mfma_f32_16x16x32_bf16 v[{SUM}:{SUM+3}], {fa(buf,0)}, {ones}, {C(SUM)}")
                ri = 0; di = 0
                for i, m in enumerate(mf):
                    a(m)
                    if ri < len(rd): a(rd[ri]); ri += 1
                    if i in (2, 5, 7, 9) and di < len(dm):
                        for x in dm[di]: a(x)
                        di += 1
                while ri < len(rd): a(rd[ri]); ri += 1
                while di < len(dm):
                    for x in dm[di]: a(x)
                    di += 1
                if isq:
                    a(f"v_mfma_f32_16x16x32_bf16 v[{CSUM}:{CSUM+3}], {ones}, {fb(buf,0)}, {C(CSUM)}")
                else:
                    l1, l2 = self.lab("cs"), self.lab("cs")
                    a(f"s_cmp_lt_u32 s{sWR}, 2")
                    a(f"s_cbranch_scc0 {l1}")
                    a(f"v_mfma_f32_16x16x32_bf16 v[{CSUM}:{CSUM+3}], {ones}, {fb(buf,0)}, {C(CSUM)}")
                    a(f"s_branch {l2}")
                    a.label(l1)
                    a(f"v_mfma_f32_16x16x32_bf16 v[{CSUM}:{CSUM+3}], {ones}, {fb(buf,2)}, {C(CSUM)}")
                    a.label(l2)
            self.stamp(9)
            self.p1_epilogue(isq, ACC, GRAM, SUM, CSUM, sWR, sWC)
            self.stamp(10)
            a("s_branch L_p1_done")
        a.label("L_p1_spare")
        a.flush_hazards(4)
        self.rp_setup()
        self.spare()
        self.mode_via_lds(standalone=True)
        a.label("L_p1_done")
        a.flush_hazards(8)

    def mode_poll(self, lds_addr):
        a = self.a
        lab = self.lab("md")
        a(f"s_cmp_lg_u32 s{sW}, {SYNCW}")
        a(f"s_cbranch_scc1 {lab}")
        a(f"s_lshl_b32 s68, s{sX}, 7")
        if F_XCC: a(f"s_add_u32 s68, s68, {F_XCC}")
        a("v_min_u32 v250, 59, v1")
        a("v_lshlrev_b32 v250, 4, v250")
        a(f"s_mov_b32 s14, {F_RPU + 50*4}")
        a(f"buffer_load_dwordx4 v[244:247], v250, {srd(rWS)}, s14 offen sc1")
        a("v_min_u32 v250, 15, v1")
        a("v_lshlrev_b32 v250, 2, v250")
        a(f"s_mov_b32 s14, {F_RPO}")
        a(f"buffer_load_dword v251, v250, {srd(rWS)}, s14 offen sc1")
        self.poll(68, 32)
        a("v_and_b32 v253, 7, v253")
        a(f"v_cmp_ne_u32 vcc, s{sXCC}, v253")
        a("s_nop 1")
        a("s_cmp_eq_u64 vcc, 0")
        a(f"s_cselect_b32 s{T0}, 1, 0")
        a("v_and_b32 v254, -8, v251")
        a(f"v_cmp_ne_u32 vcc, s{sEP}, v254")
        for r in range(4):
            a(f"v_and_b32 v254, -8, v{244+r}")
            a(f"v_cmp_ne_u32 s[14:15], s{sEP}, v254")
            a("s_or_b64 vcc, vcc, s[14:15]")
        a("s_cmp_eq_u64 vcc, 0")
        a(f"s_cselect_b32 s{T1}, 2, 0")
        a(f"s_or_b32 s{T0}, s{T0}, s{T1}")
        a(f"v_mov_b32 v253, s{T0}")
        a(f"v_mov_b32 v252, {lds_addr}")
        a("ds_write_b32 v252, v253")
        a.label(lab)

    def l2_prefetch(self, pieces):
        a = self.a
        for base, nb in pieces:
            a(f"s_mul_i32 s{T0}, s{sJ}, {nb*1024}")
            a(f"s_lshl_b32 s{T1}, s{sW}, 10")
            a(f"s_add_u32 s{T0}, s{T0}, s{T1}")
            a(f"s_add_u32 s{T0}, s{T0}, {base}")
            for k in range((nb + 7)//8):
                l2 = None
                if 8*k + 7 >= nb:
                    l2 = self.lab("pf")
                    a(f"s_cmp_ge_u32 s{sW}, {nb - 8*k}")
                    a(f"s_cbranch_scc1 {l2}")
                a(f"buffer_load_dwordx4 v[{232 + 4*(k & 1)}:{235 + 4*(k & 1)}], v2, {srd(rWS)}, s{T0} offen sc1")
                a(f"s_add_u32 s{T0}, s{T0}, 8192")
                if l2: a.label(l2)

    def mode_read(self, lds_addr):
        a = self.a
        a(f"v_mov_b32 v15, {lds_addr}")
        a("ds_read_b32 v13, v15")
        a("s_waitcnt lgkmcnt(0)")
        a(f"v_readfirstlane_b32 s{sMODE}, v13")
        self.mode_split()

    def mode_split(self):
        a = self.a
        lab = self.lab("npf")
        a(f"s_and_b32 s{sMODE}, s{sMODE}, 1")

    def mode_via_lds(self, standalone):
        a = self.a
        a("s_barrier")
        self.mode_poll(2560)
        a("s_waitcnt lgkmcnt(0)")
        a("s_barrier")
        self.mode_read(2560)

    def p1_epilogue(self, isq, ACC, GRAM, SUM, CSUM, sWR, sWC):
        a = self.a
        L_SUM, L_SQ, L_CS, L_MODE = 0, 512, 1024, 2560
        a("s_barrier")
        a(f"s_lshl_b32 s{T0}, s{sWR}, 1")
        a(f"s_add_u32 s{T0}, s{T0}, s{sWC}")
        a(f"s_lshl_b32 s{T0}, s{T0}, 6")
        a("s_mov_b32 s88, 0x22222222\ns_mov_b32 s89, 0x22222222")
        a("s_mov_b32 s90, 0x44444444\ns_mov_b32 s91, 0x44444444")
        a("s_mov_b32 s92, 0x88888888\ns_mov_b32 s93, 0x88888888")
        a("v_lshlrev_b32 v10, 2, v4")
        a(f"v_add_u32 v10, s{T0}, v10")
        a("v_lshlrev_b32 v11, 4, v3")
        a(f"v_add_u32 v11, s{T0}, v11")
        G = GRAM
        a(f"v_cndmask_b32 v14, v{G}, v{G+1}, s[88:89]")
        a(f"v_cndmask_b32 v14, v14, v{G+2}, s[90:91]")
        a(f"v_cndmask_b32 v14, v14, v{G+3}, s[92:93]")
        if isq: a(f"s_lshl_b32 s{T1}, s84, 6")
        else:
            a(f"s_cmp_lt_u32 s{sWR}, 2")
            a(f"s_cselect_b32 s{T1}, s84, s86")
            a(f"s_lshl_b32 s{T1}, s{T1}, 6")
        a("v_lshlrev_b32 v12, 2, v4")
        a(f"v_add_u32 v12, s{T1}, v12")
        a("s_mov_b32 exec_lo, 0x00F0000F\ns_mov_b32 exec_hi, 0xF0000F00")
        a(f"ds_write_b32 v10, v14 offset:{L_SQ}")
        a("s_mov_b32 exec_lo, 0x00010001\ns_mov_b32 exec_hi, 0x00010001")
        a(f"ds_write_b128 v11, v[{SUM}:{SUM+3}] offset:{L_SUM}")
        a("s_mov_b32 exec_lo, 0xffff\ns_mov_b32 exec_hi, 0")
        a(f"ds_write_b32 v12, v{CSUM} offset:{L_CS}")
        a("s_mov_b64 exec, -1")
        self.stamp(46)
        self.mode_poll(L_MODE)
        a("s_waitcnt lgkmcnt(0)")
        self.stamp(47)
        a("s_barrier")
        self.stamp(48)
        LOG2E = f32(1.4426950408889634)
        EPS6 = f32(1e-6)
        K640 = f32(1/640)
        a(f"s_mov_b32 s88, {EPS6}\ns_mov_b32 s89, {EPS6}")
        a(f"s_mov_b32 s90, {LOG2E}\ns_mov_b32 s91, {LOG2E}")
        a(f"s_mov_b32 s92, {K640}\ns_mov_b32 s93, {K640}")
        TMP = 16; PKD = 24
        a(f"v_mov_b32 v15, {L_MODE}")
        a("ds_read_b32 v13, v15")
        if not isq:
            M, R, R2, CS = 44, 52, 60, 68
            for i in range(2):
                a(f"s_xor_b32 s{T0}, s{sWC}, {i}")
                a(f"s_lshl_b32 s{T1}, s{sWR}, 1")
                a(f"s_add_u32 s{T0}, s{T0}, s{T1}")
                a(f"s_lshl_b32 s{T0}, s{T0}, 6")
                a("v_lshlrev_b32 v10, 4, v3")
                a(f"v_add_u32 v10, s{T0}, v10")
                a(f"ds_read_b128 v[{M+4*i}:{M+4*i+3}], v10 offset:{L_SUM}")
                a(f"ds_read_b128 v[{R+4*i}:{R+4*i+3}], v10 offset:{L_SQ}")
            for t in range(4):
                a(f"s_lshl_b32 s{T1}, s{84+t}, 6")
                a("v_lshlrev_b32 v12, 2, v4")
                a(f"v_add_u32 v12, s{T1}, v12")
                a(f"ds_read_b32 v{CS+2*t}, v12 offset:{L_CS}")
            a("s_waitcnt lgkmcnt(0)")
            n = 4
        else:
            M, R, R2, CS = 44, 48, 52, 56
            for i in range(2):
                a(f"s_xor_b32 s{T0}, s{sWC}, {i}")
                a(f"s_lshl_b32 s{T1}, s{sWR}, 1")
                a(f"s_add_u32 s{T0}, s{T0}, s{T1}")
                a(f"s_lshl_b32 s{T0}, s{T0}, 6")
                a("v_lshlrev_b32 v10, 2, v4")
                a(f"v_add_u32 v10, s{T0}, v10")
                a(f"ds_read_b32 v{M+2*i}, v10 offset:{L_SUM}")
                a(f"ds_read_b32 v{R+2*i}, v10 offset:{L_SQ}")
            for t in range(4):
                a(f"s_lshl_b32 s{T1}, s{84+t}, 6")
                a("v_lshlrev_b32 v12, 4, v3")
                a(f"v_add_u32 v12, s{T1}, v12")
                a(f"ds_read_b128 v[{CS+4*t}:{CS+4*t+3}], v12 offset:{L_CS}")
            a("s_waitcnt lgkmcnt(0)")
            n = 2
        a(f"v_readfirstlane_b32 s{sMODE}, v13")
        self.mode_split()
        for p in range(n):
            mp = f"v[{M+2*p}:{M+2*p+1}]"; rp = f"v[{R+2*p}:{R+2*p+1}]"
            a(f"v_pk_mul_f32 {mp}, {mp}, s[92:93]")
            a(f"v_pk_mul_f32 {rp}, {rp}, s[92:93]")
            a(f"v_pk_fma_f32 {rp}, {mp}, {mp}, {rp} neg_lo:[1,0,0] neg_hi:[1,0,0]")
        for r in range(2*n):
            if isq and (r & 1): continue
            a(f"v_max_f32 v{R+r}, 0, v{R+r}")
            a(f"v_add_f32 v{R+r}, {f32(1e-5)}, v{R+r}")
            a(f"v_rsq_f32 v{R+r}, v{R+r}")
        for p in range(n):
            rp = f"v[{R+2*p}:{R+2*p+1}]"; r2 = f"v[{R2+2*p}:{R2+2*p+1}]"
            a(f"v_pk_mul_f32 {r2}, {rp}, s[90:91]")
        self.stamp(49)
        def phi(A0):
            for r in range(4): a(f"v_min_f32 v{TMP+r}, 0, v{TMP+r}")
            for r in range(4): a(f"v_exp_f32 v{TMP+r}, v{TMP+r}")
            for r in range(4): a(f"v_max_f32 v{A0+r}, {EPS6}, v{A0+r}")
            for r in range(4): a(f"v_add_f32 v{A0+r}, v{A0+r}, v{TMP+r}")
        def cond_swap(pk, sreg_bit):
            lab = self.lab("sw")
            a(f"s_cmp_eq_u32 s{sreg_bit}, 0")
            a(f"s_cbranch_scc1 {lab}")
            a(f"v_swap_b32 v{pk}, v{pk+2}")
            a(f"v_swap_b32 v{pk+1}, v{pk+3}")
            a.label(lab)
        if not isq:
            a(f"s_lshl_b32 s{T0}, s{sX}, 3")
            a(f"s_lshl_b32 s{T1}, s{sRB}, 2")
            a(f"s_add_u32 s{T0}, s{T0}, s{T1}")
            a(f"s_add_u32 s{T0}, s{T0}, s{sWR}")
            a(f"s_mul_i32 s{T0}, s{T0}, 40")
            a(f"s_sub_u32 s{T1}, s{sCT}, 5")
            a(f"s_lshl_b32 s{T1}, s{T1}, 2")
            a(f"s_add_u32 s94, s{T0}, s{T1}")
            for t in range(4):
                isk = t < 2
                pk = PKD + 4*(t & 1)
                for i in range(2):
                    A0 = ACC + (i*4 + t)*4
                    for p in range(2):
                        ap = f"v[{A0+2*p}:{A0+2*p+1}]"
                        mp = f"v[{M+4*i+2*p}:{M+4*i+2*p+1}]"
                        rp = f"v[{R+4*i+2*p}:{R+4*i+2*p+1}]"
                        r2 = f"v[{R2+4*i+2*p}:{R2+4*i+2*p+1}]"
                        cs = f"v[{CS+2*t}:{CS+2*t+1}]"
                        a(f"v_pk_fma_f32 {ap}, {mp}, {cs}, {ap} op_sel_hi:[1,0,1] neg_lo:[1,0,0] neg_hi:[1,0,0]")
                        if isk:
                            a(f"v_pk_mul_f32 v[{TMP+2*p}:{TMP+2*p+1}], {ap}, {r2}")
                            a(f"v_pk_fma_f32 {ap}, {ap}, {rp}, s[88:89]")
                        else:
                            a(f"v_pk_mul_f32 {ap}, {ap}, {rp}")
                    if isk: phi(A0)
                    a(f"v_cvt_pk_bf16_f32 v{pk+2*i}, v{A0}, v{A0+1}")
                    a(f"v_cvt_pk_bf16_f32 v{pk+2*i+1}, v{A0+2}, v{A0+3}")
                cond_swap(pk, sWC)
                a(f"s_and_b32 s{T1}, s{84+t}, 3")
                a(f"s_add_u32 s{T0}, s94, s{T1}")
                a(f"s_lshl_b32 s{T0}, s{T0}, 10")
                a(f"s_add_u32 s{T0}, s{T0}, {PK if isk else VV}")
                self.hstore(f"buffer_store_dwordx4 v[{pk}:{pk+3}], v2, {srd(rWS)}, s{T0} offen")
        else:
            a(f"s_and_b32 s95, s{sWR}, 1")
            for i in range(2):
                for pr in range(2):
                    pk = PKD + 4*(pr & 1)
                    for t2 in range(2):
                        t = 2*pr + t2
                        A0 = ACC + (i*4 + t)*4
                        for p in range(2):
                            ap = f"v[{A0+2*p}:{A0+2*p+1}]"
                            cs = f"v[{CS+4*t+2*p}:{CS+4*t+2*p+1}]"
                            mp = f"v[{M+2*i}:{M+2*i+1}]"
                            rp = f"v[{R+2*i}:{R+2*i+1}]"
                            r2 = f"v[{R2+2*i}:{R2+2*i+1}]"
                            a(f"v_pk_fma_f32 {ap}, {cs}, {mp}, {ap} op_sel_hi:[1,0,1] neg_lo:[1,0,0] neg_hi:[1,0,0]")
                            a(f"v_pk_mul_f32 v[{TMP+2*p}:{TMP+2*p+1}], {ap}, {r2} op_sel_hi:[1,0]")
                            a(f"v_pk_fma_f32 {ap}, {ap}, {rp}, s[88:89] op_sel_hi:[1,0,1]")
                        phi(A0)
                        a(f"v_cvt_pk_bf16_f32 v{pk+2*t2}, v{A0}, v{A0+1}")
                        a(f"v_cvt_pk_bf16_f32 v{pk+2*t2+1}, v{A0+2}, v{A0+3}")
                    cond_swap(pk, 95)
                    a(f"s_lshl_b32 s{T0}, s{sX}, 4")
                    a(f"s_lshl_b32 s{T1}, s{sRB}, 3")
                    a(f"s_add_u32 s{T0}, s{T0}, s{T1}")
                    a(f"s_lshl_b32 s{T1}, s{sWR}, 1")
                    a(f"s_add_u32 s{T0}, s{T0}, s{T1}")
                    a(f"s_xor_b32 s{T1}, s{sWC}, {i}")
                    a(f"s_add_u32 s{T0}, s{T0}, s{T1}")
                    a(f"s_mul_i32 s{T0}, s{T0}, 20")
                    a(f"s_lshl_b32 s{T1}, s{sCT}, 2")
                    a(f"s_add_u32 s{T0}, s{T0}, s{T1}")
                    a(f"s_lshl_b32 s{T1}, s{sWC}, 1")
                    a(f"s_add_u32 s{T0}, s{T0}, s{T1}")
                    a(f"s_lshr_b32 s{T1}, s{sWR}, 1")
                    a(f"s_xor_b32 s{T1}, s{T1}, {pr}")
                    a(f"s_add_u32 s{T0}, s{T0}, s{T1}")
                    a(f"s_lshl_b32 s{T0}, s{T0}, 10")
                    a(f"s_add_u32 s{T0}, s{T0}, {PQ}")
                    self.hstore(f"buffer_store_dwordx4 v[{pk}:{pk+3}], v2, {srd(rWS)}, s{T0} offen")

    RP_V = 224
    def rp_setup(self):
        a = self.a
        self.mk_srd(60, pWO, 640*1280)
        self.mk_srd(64, pW1, 640*3072)
        self.mk_srd(88, pW2, 1536*1280)

    def rp_issue(self, su, lds_base_sgpr, stash_lane):
        a = self.a
        rWO, rW1, rW2 = 60, 64, 88
        sKIND, sCG, sKC = 70, 71, 74
        l1, l2, l3 = self.lab("dc"), self.lab("dc"), self.lab("dc")
        a(f"s_cmp_lt_u32 s{su}, 50")
        a(f"s_cbranch_scc0 {l1}")
        a(f"s_mov_b32 s{sKIND}, 0")
        self.sdivmod(sKC, sCG, su, 10)
        a(f"s_branch {l3}")
        a.label(l1)
        a(f"s_cmp_lt_u32 s{su}, 170")
        a(f"s_cbranch_scc0 {l2}")
        a(f"s_mov_b32 s{sKIND}, 1")
        a(f"s_sub_u32 s75, s{su}, 50")
        self.sdivmod(sKC, sCG, 75, 24)
        a(f"s_branch {l3}")
        a.label(l2)
        a(f"s_mov_b32 s{sKIND}, 2")
        a(f"s_sub_u32 s75, s{su}, 170")
        self.sdivmod(sKC, sCG, 75, 10)
        a.label(l3)
        a("v_lshrrev_b32 v226, 3, v1")
        a("v_and_b32 v227, 7, v1")
        a("v_lshrrev_b32 v228, 1, v226")
        a("v_and_b32 v228, 3, v228")
        a("v_lshlrev_b32 v228, 1, v228")
        a("v_xor_b32 v227, v227, v228")
        a("v_lshlrev_b32 v227, 4, v227")
        for q in range(2):
            a(f"s_lshl_b32 s12, s{sW}, 4")
            a(f"s_add_u32 s12, s12, {8*q}")
            a("v_add_u32 v228, s12, v226")
            lstd, lrow = self.lab("r"), self.lab("r")
            a(f"s_cmp_lg_u32 s{sKIND}, 0")
            a(f"s_cbranch_scc1 {lstd}")
            a(f"s_lshl_b32 s13, s{sKC}, 2")
            a("v_lshrrev_b32 v229, 5, v228")
            a("v_add_u32 v229, s13, v229")
            a("v_and_b32 v230, 31, v228")
            a("v_lshrrev_b32 v231, 4, v230")
            a("v_and_b32 v232, 15, v230")
            a("v_mul_u32_u24 v233, 40, v229")
            a("v_mul_u32_u24 v234, 20, v231")
            a("v_add3_u32 v233, v233, v234, v232")
            a("v_subrev_u32 v234, 16, v229")
            a("v_mul_u32_u24 v234, 160, v234")
            a("v_mul_u32_u24 v235, 80, v231")
            a("v_lshrrev_b32 v236, 2, v232")
            a("v_mul_u32_u24 v236, 20, v236")
            a("v_add3_u32 v234, v234, v235, v236")
            a("v_and_b32 v235, 3, v232")
            a("v_add3_u32 v234, v234, v235, 16")
            a("v_cmp_gt_u32 vcc, 16, v229")
            a("v_cndmask_b32 v229, v234, v233, vcc")
            a(f"s_branch {lrow}")
            a.label(lstd)
            a(f"s_lshl_b32 s13, s{sKC}, 7")
            a("v_add_u32 v229, s13, v228")
            a.label(lrow)
            a(f"s_cmp_eq_u32 s{sKIND}, 1")
            a("s_movk_i32 s13, 1280")
            a("s_cselect_b32 s13, 3072, s13")
            a("v_mul_lo_u32 v229, v229, s13")
            a("v_add_u32 v229, v229, v227")
            a(f"s_lshl_b32 s13, s{sCG}, 7")
            a(f"s_lshl_b32 s14, s{sW}, 11")
            a(f"s_add_u32 s14, s14, s{lds_base_sgpr}")
            a(f"s_add_u32 m0, s14, {q*1024}")
            k0, k1, k2 = self.lab("k"), self.lab("k"), self.lab("k")
            a(f"s_cmp_eq_u32 s{sKIND}, 1")
            a(f"s_cbranch_scc1 {k0}")
            a(f"s_cmp_eq_u32 s{sKIND}, 2")
            a(f"s_cbranch_scc1 {k1}")
            a(f"buffer_load_dwordx4 v229, {srd(rWO)}, s13 offen lds")
            a(f"s_branch {k2}")
            a.label(k0)
            a(f"buffer_load_dwordx4 v229, {srd(rW1)}, s13 offen lds")
            a(f"s_branch {k2}")
            a.label(k1)
            a(f"buffer_load_dwordx4 v229, {srd(rW2)}, s13 offen lds")
            a.label(k2)
        a(f"s_and_b32 s78, s{sW}, 3")
        a(f"s_lshr_b32 s79, s{sW}, 2")
        a(f"s_lshl_b32 s12, s{sCG}, 2")
        a("s_add_u32 s12, s12, s78")
        for e in range(2):
            a(f"s_lshl_b32 s13, s{sKC}, 2")
            a("s_lshl_b32 s14, s79, 1")
            a("s_add_u32 s13, s13, s14")
            if e: a("s_add_u32 s13, s13, 1")
            d0, d1, d2 = self.lab("d"), self.lab("d"), self.lab("d")
            a(f"s_cmp_eq_u32 s{sKIND}, 1")
            a(f"s_cbranch_scc1 {d0}")
            a(f"s_cmp_eq_u32 s{sKIND}, 2")
            a(f"s_cbranch_scc1 {d1}")
            self.sdivmod(3, 83, 12, 5)
            self.sdivmod(92, 93, 13, 10)
            a("s_mul_i32 s3, s3, 100\ns_mul_i32 s93, s93, 10\ns_mul_i32 s92, s92, 5")
            a("s_add_u32 s3, s3, s83\ns_add_u32 s3, s3, s92\ns_add_u32 s3, s3, s93")
            a("s_lshl_b32 s3, s3, 10")
            a(f"s_add_u32 s3, s3, {WOF}")
            a(f"s_branch {d2}")
            a.label(d0)
            self.sdivmod(3, 83, 12, 6)
            self.sdivmod(92, 93, 13, 10)
            a("s_mul_i32 s3, s3, 120\ns_mul_i32 s93, s93, 12\ns_mul_i32 s92, s92, 6")
            a("s_add_u32 s3, s3, s83\ns_add_u32 s3, s3, s92\ns_add_u32 s3, s3, s93")
            a("s_lshl_b32 s3, s3, 10")
            a(f"s_add_u32 s3, s3, {W1F}")
            a(f"s_branch {d2}")
            a.label(d1)
            self.sdivmod(3, 83, 12, 5)
            self.sdivmod(92, 93, 13, 12)
            a("s_mul_i32 s3, s3, 240\ns_mul_i32 s93, s93, 20\ns_mul_i32 s92, s92, 5")
            a("s_add_u32 s3, s3, s83\ns_add_u32 s3, s3, s92\ns_add_u32 s3, s3, s93")
            a("s_lshl_b32 s3, s3, 10")
            a(f"s_add_u32 s3, s3, {W2F}")
            a.label(d2)
            a(f"v_writelane_b32 v248, s3, {stash_lane + e}")
        a(f"s_lshl_b32 s13, s{sKC}, 1")
        a("s_add_u32 s13, s13, s79")
        a("s_mul_i32 s13, s13, 1536")
        a("s_lshl_b32 s14, s12, 4")
        a("s_add_u32 s13, s13, s14")
        a("s_lshl_b32 s13, s13, 2")
        a(f"s_add_u32 s13, s13, {CS1P}")
        a(f"s_cmp_eq_u32 s{sKIND}, 1")
        a("s_cselect_b32 s13, s13, 0")
        a(f"v_writelane_b32 v248, s13, {stash_lane + 2}")

    def rp_process(self, lds_base, stash_lane):
        a = self.a
        a("v_lshrrev_b32 v226, 2, v4")
        a("v_and_b32 v227, 3, v4")
        a("v_lshl_add_u32 v228, v3, 2, v226")
        a("v_lshrrev_b32 v229, 1, v228")
        a("v_and_b32 v229, 3, v229")
        a("v_lshlrev_b32 v229, 1, v229")
        a(f"s_and_b32 s12, s{sW}, 3")
        a("s_lshl_b32 s12, s12, 1")
        a("v_lshrrev_b32 v230, 1, v227")
        a("v_or_b32 v230, s12, v230")
        a("v_xor_b32 v230, v230, v229")
        a("v_lshlrev_b32 v230, 4, v230")
        a("v_lshl_add_u32 v230, v228, 7, v230")
        a("v_and_b32 v227, 1, v227")
        a("v_lshl_add_u32 v230, v227, 3, v230")
        a(f"s_lshr_b32 s12, s{sW}, 2")
        a("s_lshl_b32 s12, s12, 13")
        if isinstance(lds_base, int): a(f"s_add_u32 s12, s12, {lds_base}")
        else: a(f"s_add_u32 s12, s12, s{lds_base[0]}")
        a("v_add_u32 v230, s12, v230")
        a("ds_read_b64_tr_b16 v[232:233], v230")
        a("ds_read_b64_tr_b16 v[234:235], v230 offset:2048")
        a("ds_read_b64_tr_b16 v[236:237], v230 offset:4096")
        a("ds_read_b64_tr_b16 v[238:239], v230 offset:6144")
        if isinstance(stash_lane, int):
            a(f"v_readlane_b32 s12, v248, {stash_lane}")
            a(f"v_readlane_b32 s13, v248, {stash_lane+1}")
            a(f"v_readlane_b32 s14, v248, {stash_lane+2}")
        else:
            a(f"v_readlane_b32 s12, v248, s{stash_lane[0]}")
            a(f"s_add_u32 s15, s{stash_lane[0]}, 1")
            a(f"v_readlane_b32 s13, v248, s15")
            a(f"s_add_u32 s15, s{stash_lane[0]}, 2")
            a(f"v_readlane_b32 s14, v248, s15")
        a("s_waitcnt lgkmcnt(0)")
        a(f"buffer_store_dwordx4 v[232:235], v2, {srd(rWS)}, s12 offen sc1")
        a(f"buffer_store_dwordx4 v[236:239], v2, {srd(rWS)}, s13 offen sc1")
        lc = self.lab("cs")
        a("s_cmp_eq_u32 s14, 0")
        a(f"s_cbranch_scc1 {lc}")
        for i in range(4): a(f"v_mov_b32 v{240+i}, 0x3f803f80")
        a("v_mfma_f32_16x16x32_bf16 v[244:247], v[232:235], v[240:243], 0")
        a("v_mfma_f32_16x16x32_bf16 v[244:247], v[236:239], v[240:243], v[244:247]")
        a("v_lshlrev_b32 v226, 4, v3")
        a("v_mov_b32 v227, 0x20000000")
        a("v_cmp_eq_u32 vcc, 0, v4")
        a("v_cndmask_b32 v226, v227, v226, vcc")
        a(f"buffer_store_dwordx4 v[244:247], v226, {srd(rWS)}, s14 offen sc1")
        a.label(lc)
        a.flush_hazards(2)

    def spare(self):
        a = self.a
        a(f"s_lshl_b32 s69, s{sX}, 1")
        a(f"s_add_u32 s69, s69, s{sRB}")
        self.epoch_issue()
        a("s_mov_b32 s68, 0")
        lp, lq, ld1, ld2 = self.lab("sp"), self.lab("sp"), self.lab("sp"), self.lab("sp")
        a.label(lp)
        a("s_lshl_b32 s97, s68, 4")
        a("s_add_u32 s97, s97, s69")
        a("s_cmp_ge_u32 s97, 50")
        a(f"s_cbranch_scc1 {ld1}")
        a("s_lshl_b32 s98, s68, 14")
        self.rp_issue_dyn(97, 98, 68)
        a("s_add_u32 s68, s68, 1")
        a("s_cmp_lt_u32 s68, 4")
        a(f"s_cbranch_scc1 {lp}")
        a.label(ld1)
        a("s_waitcnt vmcnt(0)")
        a("s_barrier")
        self.epoch_take(blocking=True)
        a("s_mov_b32 s68, 0")
        a.label(lq)
        a("s_lshl_b32 s97, s68, 4")
        a("s_add_u32 s97, s97, s69")
        a("s_cmp_ge_u32 s97, 50")
        a(f"s_cbranch_scc1 {ld2}")
        a("s_lshl_b32 s98, s68, 14")
        a("s_lshl_b32 s85, s68, 2")
        self.rp_process((98,), (85,))
        a("s_add_u32 s68, s68, 1")
        a("s_cmp_lt_u32 s68, 4")
        a(f"s_cbranch_scc1 {lq}")
        a.label(ld2)
        a("s_lshl_b32 s97, s69, 2")
        a(f"s_add_u32 s97, s97, {F_RPO}")
        self.signal(97, glob=True)
        self.stamp(9)

    def rp_issue_dyn(self, su, lds_base_sgpr, k_sgpr):
        a = self.a
        n0 = len(a.lines)
        self.rp_issue(su, lds_base_sgpr, 1000)
        for i in range(n0, len(a.lines)):
            ln = a.lines[i]
            if "v_writelane_b32 v248" in ln:
                e = int(ln.split(",")[-1]) - 1000
                src = ln.split(",")[1].strip()
                a.lines[i] = f"  s_lshl_b32 s86, s{k_sgpr}, 2\n  s_add_u32 m0, s86, {e}\n  s_nop 3\n  v_writelane_b32 v248, {src}, m0"
    def p1b(self):
        a = self.a
        a(f"s_lshl_b32 s68, s{sX}, 7")
        a(f"s_add_u32 s68, s68, {F_S1}")
        a(f"s_lshl_b32 s69, s{sJ}, 2")
        a("s_add_u32 s69, s69, s68")
        self.signal(69)
        self.stamp(11)
        sDT, sET, sTH, sC0, sA4 = 70, 71, 72, 73, 74
        a(f"s_bfe_u32 s{sDT}, s{sW}, 0x10001")
        a(f"s_and_b32 s{sET}, s{sW}, 1")
        a(f"s_lshr_b32 s{sTH}, s{sW}, 2")
        a(f"s_mul_i32 s{sC0}, s{sJ}, 5")
        a(f"s_lshr_b32 s{sC0}, s{sC0}, 2")
        a(f"s_and_b32 s{sA4}, s{sJ}, 3")
        a(f"s_lshl_b32 s{sA4}, s{sA4}, 2")
        a(f"s_lshl_b32 s{T0}, s{sX}, 3")
        a(f"s_lshl_b32 s{T1}, s{sTH}, 2")
        a(f"s_add_u32 s{T0}, s{T0}, s{T1}")
        a(f"s_mul_i32 s{T0}, s{T0}, 40")
        a(f"s_add_u32 s{T0}, s{T0}, s{sC0}")
        a(f"s_add_u32 s75, s{T0}, s{sDT}")
        a(f"s_add_u32 s76, s{T0}, s{sET}")
        a("s_lshl_b32 s75, s75, 10")
        a("s_lshl_b32 s76, s76, 10")
        a(f"s_add_u32 s75, s75, {PK}")
        a(f"s_add_u32 s76, s76, {VV}")
        for i in range(4): a(f"v_mov_b32 v{48+i}, 0x3f803f80")
        a(f"s_lshl_b32 s{T0}, s{sDT}, 4")
        a(f"s_sub_u32 s{T0}, s{T0}, s{sA4}")
        a(f"v_lshl_add_u32 v60, v3, 2, s{T0}")
        a(f"s_lshl_b32 s{T1}, s{sET}, 4")
        a(f"s_sub_u32 s{T1}, s{T1}, s{sA4}")
        a(f"v_add_u32 v61, s{T1}, v4")
        a("v_mul_u32_u24 v62, 20, v61")
        a("v_add_u32 v62, v62, v60")
        a("v_lshlrev_b32 v62, 2, v62")
        a("v_cmp_gt_u32 vcc, 20, v60")
        a("v_cmp_gt_u32 s[12:13], 20, v61")
        a("s_and_b64 s[12:13], s[12:13], vcc")
        a("v_mov_b32 v63, 0x20000000")
        a("v_cndmask_b32 v62, v63, v62, s[12:13]")
        a("v_add_u32 v64, 400, v60")
        a("v_lshlrev_b32 v64, 2, v64")
        a("v_cmp_eq_u32 s[12:13], 0, v4")
        a("s_and_b64 s[12:13], s[12:13], vcc")
        a(f"s_cmp_eq_u32 s{sET}, 0")
        a("s_cselect_b64 s[12:13], s[12:13], 0")
        a("v_cndmask_b32 v64, v63, v64, s[12:13]")
        a(f"s_lshl_b32 s77, s{sX}, 5")
        a(f"s_add_u32 s77, s77, s{sJ}")
        a("s_lshl_b32 s77, s77, 11")
        a(f"s_add_u32 s77, s77, {KVP}")
        a(f"s_and_b32 s{T0}, s{sW}, 3")
        a(f"s_lshl_b32 s{T0}, s{T0}, 11")
        a(f"v_add_u32 v65, s{T0}, v2")
        lw0 = self.lab("w")
        a(f"s_cmp_lg_u32 s{sW}, {SYNCW}")
        a(f"s_cbranch_scc1 {lw0}")
        self.poll_s1_rp(68)
        a.label(lw0)
        a("s_barrier")
        self.stamp(12)
        FK, FV = 16, 32
        for i in range(4):
            a(f"buffer_load_dwordx4 v[{FK+4*i}:{FK+4*i+3}], v2, {srd(rWS)}, s75 offen sc1")
            a(f"buffer_load_dwordx4 v[{FV+4*i}:{FV+4*i+3}], v2, {srd(rWS)}, s76 offen sc1")
            a(f"s_add_u32 s75, s75, {40*1024}")
            a(f"s_add_u32 s76, s76, {40*1024}")
        a(f"s_and_b32 s84, s{sJ}, 7")
        a(f"s_mul_i32 s84, s84, {100*1024}")
        a(f"s_add_u32 s84, s84, {WOF}")
        self.bulk_dma(84, 0, 12*1024, 100, w0=4, nw=3)
        a(f"s_mul_i32 s84, s{sCT}, {120*1024}")
        a(f"s_add_u32 s84, s84, {W1F}")
        self.bulk_dma(84, 0, 112*1024, 48, w0=4, nw=3)
        KV, Z = 52, 56
        self.stamp(40)
        a(f"s_sub_u32 s85, s{sW}, 4")
        for i in range(4):
            l1_, l2_ = self.lab("vw"), self.lab("vw")
            a("s_cmp_lt_u32 s85, 3")
            a(f"s_cbranch_scc1 {l1_}")
            a(f"s_waitcnt vmcnt({2*(3-i)})")
            a(f"s_branch {l2_}")
            a.label(l1_)
            a(f"s_waitcnt vmcnt({2*(3-i) + 49})")
            a.label(l2_)
            if i == 0: self.stamp(41)
            c = "0" if i == 0 else f"v[{KV}:{KV+3}]"
            a(f"v_mfma_f32_16x16x32_bf16 v[{KV}:{KV+3}], v[{FK+4*i}:{FK+4*i+3}], v[{FV+4*i}:{FV+4*i+3}], {c}")
            c = "0" if i == 0 else f"v[{Z}:{Z+3}]"
            a(f"v_mfma_f32_16x16x32_bf16 v[{Z}:{Z+3}], v[{FK+4*i}:{FK+4*i+3}], v[48:51], {c}")
        self.stamp(42)
        l1, l2 = self.lab("p1b"), self.lab("p1b")
        a(f"s_cmp_lt_u32 s{sW}, 4")
        a(f"s_cbranch_scc1 {l1}")
        a(f"ds_write_b128 v65, v[{KV}:{KV+3}]")
        a(f"ds_write_b128 v65, v[{Z}:{Z+3}] offset:1024")
        a("s_waitcnt lgkmcnt(0)")
        a.label(l1)
        a("s_barrier")
        self.stamp(43)
        a(f"s_cmp_ge_u32 s{sW}, 4")
        a(f"s_cbranch_scc1 {l2}")
        a("ds_read_b128 v[16:19], v65")
        a("ds_read_b128 v[20:23], v65 offset:1024")
        a("s_waitcnt lgkmcnt(0)")
        for p in range(2):
            a(f"v_pk_add_f32 v[{KV+2*p}:{KV+2*p+1}], v[{KV+2*p}:{KV+2*p+1}], v[{16+2*p}:{17+2*p}]")
            a(f"v_pk_add_f32 v[{Z+2*p}:{Z+2*p+1}], v[{Z+2*p}:{Z+2*p+1}], v[{20+2*p}:{21+2*p}]")
        a(f"buffer_store_dwordx4 v[{KV}:{KV+3}], v62, {srd(rWS)}, s77 offen sc1")
        a(f"buffer_store_dwordx4 v[{Z}:{Z+3}], v64, {srd(rWS)}, s77 offen sc1")
        a.label(l2)
        self.stamp(44)
        a(f"s_lshl_b32 s68, s{sJ}, 7")
        a(f"s_add_u32 s68, s68, {F_S2}")
        a(f"s_lshl_b32 s69, s{sX}, 2")
        a("s_add_u32 s69, s69, s68")
        lnd = self.lab("nd")
        a("s_cmp_lt_u32 s85, 3")
        a(f"s_cbranch_scc1 {lnd}")
        a("s_waitcnt vmcnt(0)")
        a.label(lnd)
        self.stamp(45)
        self.signal(69, glob=True, pre=None)
        self.stamp(13)

    def pO(self):
        a = self.a
        TB = 8*1024; TROW = 136
        sKB0, sB4, sCROSS = 80, 81, 82
        a(f"s_mul_i32 s{T0}, s{sJ}, 5")
        a(f"s_lshr_b32 s{sKB0}, s{T0}, 3")
        a(f"s_and_b32 s{sB4}, s{T0}, 7")
        a(f"s_lshl_b32 s{sB4}, s{sB4}, 2")
        a(f"s_cmp_gt_u32 s{sB4}, 12")
        a(f"s_cselect_b32 s{sCROSS}, 1, 0")
        PQF = 64
        a(f"s_lshl_b32 s{T0}, s{sX}, 4")
        a(f"s_lshl_b32 s{T1}, s{sW}, 1")
        a(f"s_add_u32 s83, s{T0}, s{T1}")
        a(f"s_mul_i32 s{T0}, s83, 20")
        a(f"s_add_u32 s{T0}, s{T0}, s{sKB0}")
        a(f"s_lshl_b32 s{T0}, s{T0}, 10")
        a(f"s_add_u32 s{T0}, s{T0}, {PQ}")
        a(f"s_add_u32 s{T1}, s{T0}, {20*1024}")
        a(f"buffer_load_dwordx4 v[{PQF}:{PQF+3}], v2, {srd(rWS)}, s{T0} offen sc1")
        a(f"buffer_load_dwordx4 v[{PQF+8}:{PQF+11}], v2, {srd(rWS)}, s{T1} offen sc1")
        a(f"buffer_load_dwordx4 v[{PQF+4}:{PQF+7}], v2, {srd(rWS)}, s{T0} offen offset:1024 sc1")
        a(f"buffer_load_dwordx4 v[{PQF+12}:{PQF+15}], v2, {srd(rWS)}, s{T1} offen offset:1024 sc1")
        for i in range(4): a(f"v_mov_b32 v{16+i}, 0")
        a("v_lshlrev_b32 v12, 4, v0")
        a(f"v_add_u32 v12, {TB}, v12")
        a("v_cmp_gt_u32 vcc, 192, v0")
        a("s_and_saveexec_b64 s[12:13], vcc")
        lab = self.lab("z")
        a(f"s_cbranch_execz {lab}")
        a("ds_write_b128 v12, v[16:19]")
        a.label(lab)
        a("s_mov_b64 exec, s[12:13]")
        a(f"s_lshl_b32 s{T0}, s{sX}, 4")
        a(f"s_lshr_b32 s{T1}, s{sJ}, 3")
        a(f"s_lshl_b32 s{T1}, s{T1}, 2")
        a(f"s_add_u32 s{T0}, s{T0}, s{T1}")
        a(f"s_lshr_b32 s{T1}, s{sW}, 1")
        a(f"s_add_u32 s{T0}, s{T0}, s{T1}")
        a(f"s_mul_i32 s{T0}, s{T0}, {16*1280}")
        a(f"s_and_b32 s{T1}, s{sJ}, 7")
        a(f"s_mul_i32 s{T1}, s{T1}, 160")
        a(f"s_add_u32 s{T0}, s{T0}, s{T1}")
        a("v_mul_u32_u24 v12, 1280, v4")
        a("v_lshl_add_u32 v12, v3, 3, v12")
        for n in range(5):
            a(f"buffer_load_dwordx2 v[{200+2*n}:{201+2*n}], v12, {srd(rX)}, s{T0} offen offset:{n*32}")
        self.stamp(14)
        a("v_mul_u32_u24 v20, 52429, v0")
        a("v_lshrrev_b32 v20, 18, v20")
        a("v_mul_u32_u24 v21, 5, v20")
        a("v_sub_u32 v21, v0, v21")
        a(f"v_mul_u32_u24 v20, {TROW}, v20")
        a("v_lshl_add_u32 v20, v21, 3, v20")
        a(f"s_lshl_b32 s{T0}, s{sB4}, 1")
        a(f"s_add_u32 s{T0}, s{T0}, {TB}")
        a(f"v_add_u32 v60, s{T0}, v20")
        a(f"v_mul_u32_u24 v61, {TROW}, v4")
        a("v_lshl_add_u32 v61, v3, 3, v61")
        a(f"v_add_u32 v61, {TB}, v61")
        a(f"s_and_b32 s{T0}, s{sJ}, 3")
        a("v_lshrrev_b32 v20, 2, v4")
        a(f"v_cmp_eq_u32 vcc, s{T0}, v20")
        a("v_and_b32 v20, 3, v4")
        a("v_add_u32 v20, 16, v20")
        a("v_mov_b32 v21, 21")
        a("v_cndmask_b32 v20, v21, v20, vcc")
        a(f"v_mul_u32_u24 v20, {TROW}, v20")
        a("v_lshl_add_u32 v62, v3, 3, v20")
        a(f"v_add_u32 v62, {TB}, v62")
        a("v_lshlrev_b32 v63, 3, v3")
        a(f"v_add_u32 v63, {TB + 20*TROW}, v63")
        a(f"s_lshl_b32 s68, s{sJ}, 7")
        a(f"s_add_u32 s68, s68, {F_S2}")
        lw = self.lab("w")
        a(f"s_cmp_lg_u32 s{sW}, {SYNCW}")
        a(f"s_cbranch_scc1 {lw}")
        self.poll(68, 8)
        a.label(lw)
        a("s_waitcnt lgkmcnt(0)")
        a("s_barrier")
        self.stamp(15)
        l7 = self.lab("ps")
        a(f"s_cmp_lg_u32 s{sW}, {SYNCW}")
        a(f"s_cbranch_scc1 {l7}")
        a(f"s_lshl_b32 s{T0}, s{sJ}, 11")
        a(f"s_add_u32 s{T0}, s{T0}, {KVP}")
        a("v_min_u32 v12, 40, v1")
        a("v_lshlrev_b32 v12, 4, v12")
        a("v_add_u32 v12, 1024, v12")
        for x in range(8):
            a(f"buffer_load_dwordx4 v[{80+4*x}:{83+4*x}], v2, {srd(rWS)}, s{T0} offen sc1")
            a(f"buffer_load_dwordx4 v[{112+4*x}:{115+4*x}], v12, {srd(rWS)}, s{T0} offen sc1")
            a(f"s_add_u32 s{T0}, s{T0}, {32*2048}")
        for base, item0 in ((80, 0), (112, 64)):
            if item0: a("v_min_u32 v20, 40, v1\nv_add_u32 v20, 64, v20")
            else: a("v_mov_b32 v20, v1")
            a("v_mul_u32_u24 v21, 52429, v20")
            a("v_lshrrev_b32 v21, 18, v21")
            a("v_mul_u32_u24 v22, 5, v21")
            a("v_sub_u32 v22, v20, v22")
            a(f"v_mul_u32_u24 v21, {TROW}, v21")
            a("v_lshl_add_u32 v21, v22, 3, v21")
            a(f"s_lshl_b32 s{T0}, s{sB4}, 1")
            a(f"s_add_u32 s{T0}, s{T0}, {TB}")
            a(f"v_add_u32 v{24 + (1 if item0 else 0)}, s{T0}, v21")
        a("s_waitcnt vmcnt(0)")
        for base, areg in ((80, 24), (112, 25)):
            for x in range(1, 8):
                a(f"v_pk_add_f32 v[{base}:{base+1}], v[{base}:{base+1}], v[{base+4*x}:{base+4*x+1}]")
                a(f"v_pk_add_f32 v[{base+2}:{base+3}], v[{base+2}:{base+3}], v[{base+4*x+2}:{base+4*x+3}]")
            a(f"v_cvt_pk_bf16_f32 v{base}, v{base}, v{base+1}")
            a(f"v_cvt_pk_bf16_f32 v{base+1}, v{base+2}, v{base+3}")
            a(f"ds_write_b64 v{areg}, v[{base}:{base+1}]")
        a("s_waitcnt lgkmcnt(0)")
        a.label(l7)
        a("s_barrier")
        for ti, va in enumerate((61, 62, 63)):
            for kp in range(2):
                F = 16 + (ti*2 + kp)*4
                a(f"ds_read_b64 v[{F}:{F+1}], v{va} offset:{kp*64}")
                a(f"ds_read_b64 v[{F+2}:{F+3}], v{va} offset:{kp*64 + 32}")
        a("s_waitcnt vmcnt(5) lgkmcnt(0)")
        a(f"s_cmp_lg_u32 s{sW}, {SYNCW}") if False else None
        ACC = 40
        for i in range(2):
            for ti in range(3):
                d = ACC + (i*3 + ti)*4
                a(f"v_mfma_f32_16x16x32_bf16 v[{d}:{d+3}], v[{16+ti*8}:{19+ti*8}], v[{PQF+8*i}:{PQF+8*i+3}], 0")
        lab = self.lab("cr")
        a(f"s_cmp_eq_u32 s{sCROSS}, 0")
        a(f"s_cbranch_scc1 {lab}")
        for i in range(2):
            for ti in range(3):
                d = ACC + (i*3 + ti)*4
                a(f"v_mfma_f32_16x16x32_bf16 v[{d}:{d+3}], v[{20+ti*8}:{23+ti*8}], v[{PQF+8*i+4}:{PQF+8*i+7}], v[{d}:{d+3}]")
        a.label(lab)
        a(f"s_and_b32 s{T0}, s{sJ}, 1")
        a(f"s_lshl_b32 s{T0}, s{T0}, 3")
        a(f"v_add_u32 v10, s{T0}, v2")
        a(f"s_bfe_u32 s{T0}, s{sJ}, 0x10002")
        a(f"s_lshl_b32 s{T0}, s{T0}, 3")
        a(f"v_add_u32 v11, s{T0}, v2")
        a(f"s_and_b32 s{T0}, s{sJ}, 3")
        a(f"v_cmp_eq_u32 vcc, s{T0}, v3")
        a("v_mov_b32 v12, 0x20000000")
        a("v_cndmask_b32 v11, v12, v11, vcc")
        a.flush_hazards(4)
        for i in range(2):
            M, Lf, D = ACC + i*12, ACC + i*12 + 4, ACC + i*12 + 8
            a(f"v_add_f32 v{D}, {f32(1e-6)}, v{D}")
            a(f"v_rcp_f32 v{D}, v{D}")
            for base in (M, Lf):
                a(f"v_pk_mul_f32 v[{base}:{base+1}], v[{base}:{base+1}], v[{D}:{D+1}] op_sel_hi:[1,0]")
                a(f"v_pk_mul_f32 v[{base+2}:{base+3}], v[{base+2}:{base+3}], v[{D}:{D+1}] op_sel_hi:[1,0]")
                a(f"v_cvt_pk_bf16_f32 v{base}, v{base}, v{base+1}")
                a(f"v_cvt_pk_bf16_f32 v{base+1}, v{base+2}, v{base+3}")
            a(f"s_add_u32 s{T0}, s83, {i}")
            a(f"s_mul_i32 s{T0}, s{T0}, 20")
            a(f"s_lshr_b32 s{T1}, s{sJ}, 1")
            a(f"s_add_u32 s{T1}, s{T1}, s{T0}")
            a(f"s_lshl_b32 s{T1}, s{T1}, 10")
            a(f"s_add_u32 s{T1}, s{T1}, {OB}")
            self.hstore(f"buffer_store_dwordx2 v[{M}:{M+1}], v10, {srd(rWS)}, s{T1} offen")
            a(f"s_lshr_b32 s{T1}, s{sJ}, 3")
            a(f"s_add_u32 s{T1}, s{T1}, s{T0}")
            a(f"s_add_u32 s{T1}, s{T1}, 16")
            a(f"s_lshl_b32 s{T1}, s{T1}, 10")
            a(f"s_add_u32 s{T1}, s{T1}, {OB}")
            self.hstore(f"buffer_store_dwordx2 v[{Lf}:{Lf+1}], v11, {srd(rWS)}, s{T1} offen")
        a(f"s_lshl_b32 s68, s{sX}, 7")
        a(f"s_add_u32 s68, s68, {F_S3}")
        a(f"s_lshl_b32 s69, s{sJ}, 2")
        a("s_add_u32 s69, s69, s68")
        self.signal(69)
        self.stamp(16)
    def ksplit_reduce(self, ACC, sKQ, sMH, RB):
        a = self.a
        a(f"s_mul_i32 s{T0}, s{sMH}, {30*1024}")
        a(f"s_add_u32 s{T0}, s{T0}, {RB}")
        a(f"s_lshr_b32 s{T1}, s{sKQ}, 1")
        a(f"s_add_u32 s{T1}, s{T1}, s{sKQ}")
        a(f"s_mul_i32 s{T1}, s{T1}, {5*1024}")
        a(f"s_add_u32 s{T1}, s{T1}, s{T0}")
        a(f"v_add_u32 v10, s{T1}, v2")
        for n in range(5):
            d = ACC + (5 + n)*4
            a(f"ds_write_b128 v10, v[{d}:{d+3}] offset:{n*1024}")
        lab = self.lab("kr")
        a(f"s_cmp_lt_u32 s{sKQ}, 2")
        a(f"s_cbranch_scc1 {lab}")
        a(f"s_and_b32 s{T1}, s{sKQ}, 1")
        a(f"s_mul_i32 s{T1}, s{T1}, {15*1024}")
        a(f"s_add_u32 s{T1}, s{T1}, {10*1024}")
        a(f"s_add_u32 s{T1}, s{T1}, s{T0}")
        a(f"v_add_u32 v10, s{T1}, v2")
        for n in range(5):
            d = ACC + n*4
            a(f"ds_write_b128 v10, v[{d}:{d+3}] offset:{n*1024}")
        a.label(lab)
        a("s_waitcnt lgkmcnt(0)")
        a("s_barrier")
        lend = self.lab("krend")
        a(f"s_cmp_ge_u32 s{sKQ}, 2")
        a(f"s_cbranch_scc1 {lend}")
        a(f"s_mul_i32 s{T1}, s{sKQ}, {5*1024}")
        a(f"s_add_u32 s{T2}, s{T0}, s{T1}")
        a(f"s_sub_u32 s{T3}, s{T0}, s{T1}")
        a(f"s_add_u32 s{T3}, s{T3}, {5*1024}")
        a(f"v_add_u32 v10, s{T3}, v2")
        a(f"v_add_u32 v11, s{T2}, v2")
        TM = ACC + 20
        for n in range(5):
            a(f"ds_read_b128 v[{TM+n*4}:{TM+n*4+3}], v10 offset:{n*1024}")
        for n in range(5):
            a(f"ds_read_b128 v[{TM+20+n*4}:{TM+20+n*4+3}], v11 offset:{10*1024 + n*1024}")
        for n in range(5):
            a(f"ds_read_b128 v[{TM+40+n*4}:{TM+40+n*4+3}], v11 offset:{20*1024 + n*1024}")
        for k in range(3):
            a(f"s_waitcnt lgkmcnt({10 - 5*k})")
            for n in range(5):
                for p in range(2):
                    d = ACC + n*4 + 2*p; s = TM + 20*k + n*4 + 2*p
                    a(f"v_pk_add_f32 v[{d}:{d+1}], v[{d}:{d+1}], v[{s}:{s+1}]")
        return lend

    def p2(self):
        a = self.a
        sRG, sC8, sTT, sKH = 70, 71, 72, 73
        a(f"s_lshr_b32 s{sRG}, s{sJ}, 3")
        a(f"s_and_b32 s{sC8}, s{sJ}, 7")
        a(f"s_lshr_b32 s{sTT}, s{sW}, 1")
        a(f"s_and_b32 s{sKH}, s{sW}, 1")
        a(f"s_lshl_b32 s77, s{sX}, 4")
        a(f"s_lshl_b32 s{T0}, s{sRG}, 2")
        a(f"s_add_u32 s77, s77, s{T0}")
        a(f"s_add_u32 s77, s77, s{sTT}")
        XR = 200
        a("v_mul_u32_u24 v12, 1280, v4")
        a("v_lshl_add_u32 v12, v3, 3, v12")
        a(f"s_mul_i32 s{T0}, s77, {16*1280}")
        a(f"s_mul_i32 s{T1}, s{sC8}, 160")
        a(f"s_add_u32 s79, s{T0}, s{T1}")
        a(f"s_mul_i32 s{T0}, s77, 20")
        a(f"s_mul_i32 s{T1}, s{sKH}, 10")
        a(f"s_add_u32 s{T0}, s{T0}, s{T1}")
        a(f"s_lshl_b32 s{T0}, s{T0}, 10")
        a(f"s_add_u32 s80, s{T0}, {OB}")
        a(f"s_mul_i32 s{T0}, s{sKH}, {5*1024}")
        a(f"s_add_u32 s{T0}, s{T0}, {12*1024}")
        a(f"v_add_u32 v13, s{T0}, v2")
        a(f"v_add_u32 v14, {50*1024}, v13")
        self.stamp(17)
        a(f"s_lshl_b32 s68, s{sX}, 7")
        a(f"s_add_u32 s68, s68, {F_S3}")
        self.wait((68, 32))
        self.stamp(18)
        OF = 16; D = 6
        self.vq_reset()
        def oload(i):
            out = []
            if i and (i & 3) == 0: out.append("s_add_u32 s80, s80, 4096")
            out.append(f"buffer_load_dwordx4 v[{OF+4*i}:{OF+4*i+3}], v2, {srd(rWS)}, s80 offen offset:{(i & 3)*1024} sc1")
            return out
        for i in range(D):
            for x in oload(i): a(x)
            self.vq_add(("o", i))
        a(f"s_mul_i32 s84, s{sCT}, {120*1024}")
        a(f"s_add_u32 s84, s84, {W1F}")
        ACC = 96; WF = 56
        def wreads(i):
            out = []
            for n in range(5):
                F = WF + (i & 1)*20 + n*4
                off = i*10*1024 + n*1024
                if i < 5: out.append(f"ds_read_b128 v[{F}:{F+3}], v13 offset:{off}")
                else: out.append(f"ds_read_b128 v[{F}:{F+3}], v14 offset:{off - 50*1024}")
            return out
        for x in wreads(0): a(x)
        for i in range(10):
            self.vq_wait(("o", i))
            rd = wreads(i + 1) if i < 9 else []
            if i + D < 10:
                rd = rd + oload(i + D); self.vq_add(("o", i + D))
            k = 0
            for n in range(5):
                d = ACC + n*4
                W = WF + (i & 1)*20 + n*4; O = OF + 4*i
                c = "0" if i == 0 else f"v[{d}:{d+3}]"
                a(f"v_mfma_f32_16x16x32_bf16 v[{d}:{d+3}], v[{W}:{W+3}], v[{O}:{O+3}], {c}")
                if k < len(rd): a(rd[k]); k += 1
            while k < len(rd): a(rd[k]); k += 1
        self.stamp(20)
        a("s_barrier")
        a(f"s_mul_i32 s{T0}, s{sW}, {5*1024}")
        a(f"s_add_u32 s{T0}, s{T0}, {72*1024}")
        a(f"v_add_u32 v10, s{T0}, v2")
        a(f"s_xor_b32 s{T1}, s{sW}, 1")
        a(f"s_mul_i32 s{T1}, s{T1}, {5*1024}")
        a(f"s_add_u32 s{T1}, s{T1}, {72*1024}")
        a(f"v_add_u32 v11, s{T1}, v2")
        lk1, lj = self.lab("k1"), self.lab("kj")
        a(f"s_cmp_eq_u32 s{sKH}, 1")
        a(f"s_cbranch_scc1 {lk1}")
        for n in (3, 4): a(f"ds_write_b128 v10, v[{ACC+4*n}:{ACC+4*n+3}] offset:{n*1024}")
        a(f"s_branch {lj}")
        a.label(lk1)
        for n in (0, 1, 2): a(f"ds_write_b128 v10, v[{ACC+4*n}:{ACC+4*n+3}] offset:{n*1024}")
        a.label(lj)
        self.bulk_dma(84, 48*1024, 0, 72)
        a("s_waitcnt lgkmcnt(0)")
        a("s_barrier")
        S, Q = 16, 18
        TM = 120
        lend = self.lab("p2e")
        for kh, tiles in ((0, (0, 1, 2)), (1, (3, 4))):
            if kh == 0:
                lk = self.lab("e1")
                a(f"s_cmp_eq_u32 s{sKH}, 1")
                a(f"s_cbranch_scc1 {lk}")
            else:
                a.label(lk)
                a.flush_hazards(2)
            for n in tiles: a(f"ds_read_b128 v[{TM+4*n}:{TM+4*n+3}], v11 offset:{n*1024}")
            a(f"v_mov_b32 v{S}, 0\nv_mov_b32 v{S+1}, 0\nv_mov_b32 v{Q}, 0\nv_mov_b32 v{Q+1}, 0")
            a("s_waitcnt lgkmcnt(0)")
            for n in tiles:
                d = ACC + n*4
                for p in range(2):
                    x = XR + 2*n + p
                    a(f"v_lshlrev_b32 v20, 16, v{x}")
                    a(f"v_and_b32 v21, 0xffff0000, v{x}")
                    a(f"v_pk_add_f32 v[{d+2*p}:{d+2*p+1}], v[{d+2*p}:{d+2*p+1}], v[{TM+4*n+2*p}:{TM+4*n+2*p+1}]")
                    a(f"v_pk_add_f32 v[{d+2*p}:{d+2*p+1}], v[{d+2*p}:{d+2*p+1}], v[20:21]")
                    a(f"v_pk_add_f32 v[{S}:{S+1}], v[{S}:{S+1}], v[{d+2*p}:{d+2*p+1}]")
                    a(f"v_pk_fma_f32 v[{Q}:{Q+1}], v[{d+2*p}:{d+2*p+1}], v[{d+2*p}:{d+2*p+1}], v[{Q}:{Q+1}]")
                a(f"v_cvt_pk_bf16_f32 v{d}, v{d}, v{d+1}")
                a(f"v_cvt_pk_bf16_f32 v{d+1}, v{d+2}, v{d+3}")
                a(f"s_mul_i32 s{T0}, s{sC8}, 5")
                a(f"s_add_u32 s{T0}, s{T0}, {n}")
                a(f"s_and_b32 s{T1}, s{T0}, 1")
                a(f"s_lshl_b32 s{T1}, s{T1}, 3")
                a(f"s_lshr_b32 s{T0}, s{T0}, 1")
                a(f"s_mul_i32 s{T2}, s77, 20")
                a(f"s_add_u32 s{T0}, s{T0}, s{T2}")
                a(f"s_lshl_b32 s{T0}, s{T0}, 10")
                a(f"s_add_u32 s{T0}, s{T0}, s{T1}")
                a(f"s_add_u32 s{T0}, s{T0}, {HB}")
                self.hstore(f"buffer_store_dwordx2 v[{d}:{d+1}], v2, {srd(rWS)}, s{T0} offen")
            if kh == 0: a(f"s_branch {lend}")
        a.label(lend)
        a.flush_hazards(2)
        a(f"v_add_f32 v{S}, v{S}, v{S+1}")
        a(f"v_add_f32 v{Q}, v{Q}, v{Q+1}")
        for sw in ("v_permlane32_swap_b32", "v_permlane16_swap_b32"):
            a(f"v_mov_b32 v20, v{S}")
            a(f"v_mov_b32 v21, v{Q}")
            a(f"{sw} v{S}, v20")
            a(f"{sw} v{Q}, v21")
            a(f"v_add_f32 v{S}, v{S}, v20")
            a(f"v_add_f32 v{Q}, v{Q}, v21")
        a(f"v_mov_b32 v{S+1}, v{Q}")
        a("v_lshlrev_b32 v20, 4, v4")
        a("v_mov_b32 v21, 0x20000000")
        a("v_cmp_eq_u32 vcc, 0, v3")
        a("v_cndmask_b32 v20, v21, v20, vcc")
        a(f"s_lshl_b32 s{T0}, s77, 11")
        a(f"s_lshl_b32 s{T1}, s{sC8}, 8")
        a(f"s_add_u32 s{T0}, s{T0}, s{T1}")
        a(f"s_lshl_b32 s{T1}, s{sKH}, 3")
        a(f"s_add_u32 s{T0}, s{T0}, s{T1}")
        a(f"s_add_u32 s{T0}, s{T0}, {ST2}")
        self.hstore(f"buffer_store_dwordx2 v[{S}:{S+1}], v20, {srd(rWS)}, s{T0} offen")
        a(f"s_lshl_b32 s68, s{sX}, 1")
        a(f"s_add_u32 s68, s68, s{sRB}")
        a("s_lshl_b32 s68, s68, 7")
        a(f"s_add_u32 s68, s68, {F_S4}")
        a(f"s_lshl_b32 s69, s{sCT}, 2")
        a("s_add_u32 s69, s69, s68")
        self.signal(69)
        self.stamp(21)

    def p3(self):
        a = self.a
        sMQ, sKH = 70, 71
        LC = 72*1024; EX = 112*1024
        a(f"s_lshr_b32 s{sMQ}, s{sW}, 1")
        a(f"s_and_b32 s{sKH}, s{sW}, 1")
        self.mk_srd(rB, pB1, 1536*2)
        a(f"s_lshl_b32 s76, s{sX}, 4")
        a(f"s_lshl_b32 s{T0}, s{sRB}, 3")
        a(f"s_add_u32 s76, s76, s{T0}")
        a(f"s_lshl_b32 s{T0}, s{sMQ}, 1")
        a(f"s_add_u32 s76, s76, s{T0}")
        a(f"s_add_u32 s77, s76, s{sKH}")
        a(f"s_xor_b32 s{T0}, s{sKH}, 1")
        a(f"s_add_u32 s78, s76, s{T0}")
        for sreg, dst in ((77, 80), (78, 81)):
            a(f"s_mul_i32 s{T0}, s{sreg}, 20")
            a(f"s_mul_i32 s{T1}, s{sKH}, 10")
            a(f"s_add_u32 s{T0}, s{T0}, s{T1}")
            a(f"s_lshl_b32 s{T0}, s{T0}, 10")
            a(f"s_add_u32 s{dst}, s{T0}, {HB}")
        a(f"s_mul_i32 s{T0}, s{sKH}, {6*1024}")
        a(f"v_add_u32 v12, s{T0}, v2")
        a(f"v_add_u32 v13, {64*1024}, v12")
        a(f"v_add_u32 v14, {128*1024}, v12")
        self.stamp(22)
        a(f"s_lshl_b32 s68, s{sX}, 1")
        a(f"s_add_u32 s68, s68, s{sRB}")
        a("s_lshl_b32 s68, s68, 7")
        a(f"s_add_u32 s68, s68, {F_S4}")
        self.wait((68, 16), pre="s_waitcnt vmcnt(0) lgkmcnt(0)")
        self.stamp(23)
        HF = 16; D = 4
        self.vq_reset()
        def hload(ks):
            out = []
            for i in range(2):
                F = HF + (i*10 + ks)*4
                if ks and (ks & 3) == 0: out.append(f"s_add_u32 s{80+i}, s{80+i}, 4096")
                out.append(f"buffer_load_dwordx4 v[{F}:{F+3}], v2, {srd(rWS)}, s{80+i} offen offset:{(ks & 3)*1024} sc1")
            return out
        for ks in range(D):
            for x in hload(ks): a(x)
            self.vq_add(("h", ks), 2, 2)
        ST = 200
        a(f"s_and_b32 s84, s{sJ}, 7")
        a(f"s_mul_i32 s84, s84, {240*1024}")
        a(f"s_add_u32 s84, s84, {W2F}")
        self.prio_young(1) if os.environ.get("PRIO","1")=="1" else None
        self.stamp(24)
        ACC = 144; WF = 96
        def wr2(ks):
            out = []
            for n in range(6):
                F = WF + (ks & 1)*24 + n*4
                b0 = ks*12 + n
                kb = 112 + b0 if ks < 4 else b0 - 48
                off = kb*1024
                out.append(f"ds_read_b128 v[{F}:{F+3}], {('v12', 'v13', 'v14')[off >> 16]} offset:{off & 0xffff}")
            return out
        for x in wr2(0): a(x)
        for ks in range(10):
            self.vq_wait(("h", ks))
            if ks == 4:
                a("s_barrier")
            rd = wr2(ks + 1) if ks < 9 else []
            if ks + D < 10:
                rd = rd + hload(ks + D); self.vq_add(("h", ks + D), 2, 2)
            k = 0
            for i in range(2):
                for n in range(6):
                    d = ACC + (i*6 + n)*4
                    W = WF + (ks & 1)*24 + n*4; H = HF + (i*10 + ks)*4
                    c = "0" if ks == 0 else f"v[{d}:{d+3}]"
                    a(f"v_mfma_f32_16x16x32_bf16 v[{d}:{d+3}], v[{W}:{W+3}], v[{H}:{H+3}], {c}")
                    if k < len(rd): a(rd[k]); k += 1
            if ks == 5:
                a(f"s_lshl_b32 s{T0}, s77, 11")
                a(f"s_add_u32 s{T0}, s{T0}, {ST2}")
                for p in range(2):
                    a(f"buffer_load_dwordx4 v[{ST+4*p}:{ST+4*p+3}], v2, {srd(rWS)}, s{T0} offen offset:{1024*p} sc1")
                self.vq_add("st", 2, 2)
                l7 = self.lab("c1")
                a(f"s_cmp_lg_u32 s{sW}, {SYNCW}")
                a(f"s_cbranch_scc1 {l7}")
                a(f"s_mul_i32 s{T0}, s{sCT}, 96")
                for rnd in range(2):
                    b = 232 + 0*rnd
                    if rnd == 0: a("v_mov_b32 v192, v1")
                    else: a("v_min_u32 v193, 31, v1\nv_add_u32 v193, 64, v193")
                    c = 192 + rnd
                    a(f"v_add_u32 v194, s{T0}, v{c}")
                    a("v_lshlrev_b32 v195, 2, v194")
                    a(f"s_mov_b32 s{T1}, {CS1P}")
                    for p in range(10):
                        a(f"buffer_load_dword v{228+12*rnd+p}, v195, {srd(rWS)}, s{T1} offen sc1")
                        a(f"s_add_u32 s{T1}, s{T1}, {1536*4}")
                    a("v_lshlrev_b32 v195, 1, v194")
                    a(f"buffer_load_ushort v{238+12*rnd}, v195, {srd(rB)}, 0 offen")
                a.label(l7)
                self.vq_add("cs", 22, 0)
                self.bulk_dma(84, 0, 80*1024, 20)
        self.stamp(25)
        a(f"s_mul_i32 s{T0}, s{sW}, {6*1024}")
        a(f"s_add_u32 s{T0}, s{T0}, {EX}")
        a(f"v_add_u32 v10, s{T0}, v2")
        a(f"s_xor_b32 s{T1}, s{sW}, 1")
        a(f"s_mul_i32 s{T1}, s{T1}, {6*1024}")
        a(f"s_add_u32 s{T1}, s{T1}, {EX}")
        a(f"v_add_u32 v11, s{T1}, v2")
        for n in range(6):
            d = ACC + (6 + n)*4
            a(f"ds_write_b128 v10, v[{d}:{d+3}] offset:{n*1024}")
        self.vq_wait("cs", lgkm=False)
        l7 = self.lab("c2")
        a(f"s_cmp_lg_u32 s{sW}, {SYNCW}")
        a(f"s_cbranch_scc1 {l7}")
        for rnd in range(2):
            b = 228 + 12*rnd
            for p in range(1, 10): a(f"v_add_f32 v{b}, v{b}, v{b+p}")
            a(f"v_lshlrev_b32 v{b+10}, 16, v{b+10}")
            a(f"v_lshlrev_b32 v{b+11}, 2, v{192+rnd}")
            a(f"v_add_u32 v{b+11}, {LC}, v{b+11}")
            a(f"ds_write_b32 v{b+11}, v{b}")
            a(f"ds_write_b32 v{b+11}, v{b+10} offset:512")
        a.label(l7)
        for p in range(1, 4):
            a(f"v_pk_add_f32 v[{ST}:{ST+1}], v[{ST}:{ST+1}], v[{ST+2*p}:{ST+2*p+1}]")
        for sw in ("v_permlane32_swap_b32", "v_permlane16_swap_b32"):
            a(f"v_mov_b32 v{ST+4}, v{ST}")
            a(f"v_mov_b32 v{ST+5}, v{ST+1}")
            a(f"{sw} v{ST}, v{ST+4}")
            a(f"{sw} v{ST+1}, v{ST+5}")
            a(f"v_pk_add_f32 v[{ST}:{ST+1}], v[{ST}:{ST+1}], v[{ST+4}:{ST+5}]")
        a(f"v_mul_f32 v{ST}, {f32(1/640)}, v{ST}")
        a(f"v_mul_f32 v{ST+1}, {f32(1/640)}, v{ST+1}")
        a(f"v_fma_f32 v{ST+1}, -v{ST}, v{ST}, v{ST+1}")
        a(f"v_max_f32 v{ST+1}, 0, v{ST+1}")
        a(f"v_add_f32 v{ST+2}, {f32(1e-5)}, v{ST+1}")
        a(f"v_rsq_f32 v{ST+2}, v{ST+2}")
        a(f"v_mul_f32 v{ST+3}, v{ST+2}, v{ST+2}")
        a(f"v_fmaak_f32 v{ST+3}, v{ST+1}, v{ST+3}, {f32(1e-5)}")
        a(f"v_rsq_f32 v{ST+3}, v{ST+3}")
        a(f"v_mul_f32 v{ST+2}, v{ST+2}, v{ST+3}")
        a("s_waitcnt lgkmcnt(0)")
        a("s_barrier")
        self.stamp(33)
        CSR, B1R = 16, 40
        for n in range(6):
            d = ACC + (6 + n)*4
            a(f"ds_read_b128 v[{d}:{d+3}], v11 offset:{n*1024}")
        a(f"v_lshlrev_b32 v12, 4, v3")
        a(f"v_add_u32 v12, {LC}, v12")
        for n in range(6):
            a(f"ds_read_b128 v[{CSR+4*n}:{CSR+4*n+3}], v12 offset:{n*64}")
            a(f"ds_read_b128 v[{B1R+4*n}:{B1R+4*n+3}], v12 offset:{512 + n*64}")
        C1 = -2*0.7978845608028654*1.4426950408889634
        C2 = C1*0.044715
        a(f"s_mov_b32 s80, {f32(C1)}\ns_mov_b32 s81, {f32(C1)}\ns_mov_b32 s82, {f32(C2)}\ns_mov_b32 s83, {f32(C2)}")
        a("v_mov_b32 v70, s80\nv_mov_b32 v71, s81")
        a("s_waitcnt lgkmcnt(0)")
        self.stamp(35)
        mean = f"v[{ST}:{ST+1}]"; scale = f"v[{ST+2}:{ST+3}]"
        a("s_barrier")
        pieces = [(20, 0, 40), (60, 40, 40), (100, 100, 30), (130, 130, 30)]
        for m in range(3):
            PKD = 72 + 4*m
            for t2 in range(2):
                n = 2*m + t2
                d = ACC + n*4; o = ACC + (6 + n)*4
                for p in range(2):
                    x = f"v[{d+2*p}:{d+2*p+1}]"; T = f"v[{64+2*p}:{65+2*p}]"
                    a(f"v_pk_add_f32 {x}, {x}, v[{o+2*p}:{o+2*p+1}]")
                    a(f"v_pk_fma_f32 {x}, v[{CSR+4*n+2*p}:{CSR+4*n+2*p+1}], {mean}, {x} op_sel_hi:[1,0,1] neg_lo:[1,0,0] neg_hi:[1,0,0]")
                    a(f"v_pk_fma_f32 {x}, {x}, {scale}, v[{B1R+4*n+2*p}:{B1R+4*n+2*p+1}] op_sel_hi:[1,0,1]")
                    a(f"v_pk_mul_f32 {T}, {x}, {x}")
                    a(f"v_pk_fma_f32 {T}, {T}, s[82:83], v[70:71]")
                    a(f"v_pk_mul_f32 {T}, {T}, {x}")
                for r in range(4): a(f"v_exp_f32 v{64+r}, v{64+r}")
                for p in range(2): a(f"v_pk_add_f32 v[{64+2*p}:{65+2*p}], v[{64+2*p}:{65+2*p}], 1.0 op_sel_hi:[1,0]")
                for r in range(4): a(f"v_rcp_f32 v{64+r}, v{64+r}")
                for p in range(2): a(f"v_pk_mul_f32 v[{d+2*p}:{d+2*p+1}], v[{d+2*p}:{d+2*p+1}], v[{64+2*p}:{65+2*p}]")
                a(f"v_cvt_pk_bf16_f32 v{PKD+2*t2}, v{d}, v{d+1}")
                a(f"v_cvt_pk_bf16_f32 v{PKD+2*t2+1}, v{d+2}, v{d+3}")
                if n < 4:
                    sk, lk, nb = pieces[n]
                    self.bulk_dma(84, sk*1024, lk*1024, nb)
        for m in range(3):
            PKD = 72 + 4*m
            a(f"s_mul_i32 s{T0}, s77, 48")
            a(f"s_mul_i32 s{T1}, s{sCT}, 3")
            a(f"s_add_u32 s{T0}, s{T0}, s{T1}")
            a(f"s_add_u32 s{T0}, s{T0}, {m}")
            a(f"s_lshl_b32 s{T0}, s{T0}, 10")
            a(f"s_add_u32 s{T0}, s{T0}, {HH}")
            self.hstore(f"buffer_store_dwordx4 v[{PKD}:{PKD+3}], v2, {srd(rWS)}, s{T0} offen")
        self.stamp(36)
        a(f"s_lshl_b32 s68, s{sX}, 1")
        a(f"s_add_u32 s68, s68, s{sRB}")
        a("s_lshl_b32 s68, s68, 7")
        a(f"s_add_u32 s68, s68, {F_S5}")
        a(f"s_lshl_b32 s69, s{sCT}, 2")
        a("s_add_u32 s69, s69, s68")
        self.signal(69)
        a("s_setprio 0")
        self.stamp(26)

    def p4(self):
        a = self.a
        sRG, sC8, sKQ, sMH = 70, 71, 72, 73
        SL = [80, 0, 20, 40, 60, 100, 120, 140, 80, 0, 20, 40]
        a(f"s_lshr_b32 s{sRG}, s{sJ}, 3")
        a(f"s_and_b32 s{sC8}, s{sJ}, 7")
        a(f"s_lshr_b32 s{sKQ}, s{sW}, 1")
        a(f"s_and_b32 s{sMH}, s{sW}, 1")
        a(f"s_lshl_b32 s76, s{sX}, 4")
        a(f"s_lshl_b32 s{T0}, s{sRG}, 2")
        a(f"s_add_u32 s76, s76, s{T0}")
        a(f"s_lshl_b32 s{T0}, s{sMH}, 1")
        a(f"s_add_u32 s76, s76, s{T0}")
        a(f"s_and_b32 s{T0}, s{sKQ}, 1")
        a(f"s_add_u32 s77, s76, s{T0}")
        a(f"s_xor_b32 s{T0}, s{T0}, 1")
        a(f"s_add_u32 s78, s76, s{T0}")
        XR = 232; B2 = 242
        self.mk_srd(rB, pB2, 640*2)
        lx = self.lab("x")
        a(f"s_cmp_ge_u32 s{sKQ}, 2")
        a(f"s_cbranch_scc1 {lx}")
        for n in range(5):
            a(f"s_mul_i32 s{T0}, s{sC8}, 5")
            a(f"s_add_u32 s{T0}, s{T0}, {n}")
            a(f"s_and_b32 s{T1}, s{T0}, 1")
            a(f"s_lshl_b32 s{T1}, s{T1}, 3")
            a(f"s_lshr_b32 s{T0}, s{T0}, 1")
            a(f"s_mul_i32 s{T2}, s77, 20")
            a(f"s_add_u32 s{T0}, s{T0}, s{T2}")
            a(f"s_lshl_b32 s{T0}, s{T0}, 10")
            a(f"s_add_u32 s{T0}, s{T0}, s{T1}")
            a(f"s_add_u32 s{T0}, s{T0}, {HB}")
            a(f"buffer_load_dwordx2 v[{XR+2*n}:{XR+2*n+1}], v2, {srd(rWS)}, s{T0} offen sc1")
        a("v_lshlrev_b32 v12, 3, v3")
        a(f"s_mul_i32 s{T0}, s{sC8}, 160")
        for n in range(5):
            a(f"buffer_load_dwordx2 v[{B2+2*n}:{B2+2*n+1}], v12, {srd(rB)}, s{T0} offen offset:{n*32}")
        a.label(lx)
        for sreg, dst in ((77, 80), (78, 81)):
            a(f"s_mul_i32 s{T0}, s{sreg}, 48")
            a(f"s_mul_i32 s{T1}, s{sKQ}, 12")
            a(f"s_add_u32 s{T0}, s{T0}, s{T1}")
            a(f"s_lshl_b32 s{T0}, s{T0}, 10")
            a(f"s_add_u32 s{dst}, s{T0}, {HH}")
        a(f"s_mul_i32 s{T0}, s{sKQ}, {5*1024}")
        a(f"v_add_u32 v13, s{T0}, v2")
        a(f"v_add_u32 v14, {64*1024}, v13")
        a(f"v_add_u32 v12, {128*1024}, v13")
        self.stamp(27)
        a(f"s_lshl_b32 s68, s{sX}, 1")
        a(f"s_add_u32 s68, s68, s{sRB}")
        a("s_lshl_b32 s68, s68, 7")
        a(f"s_add_u32 s68, s68, {F_S5}")
        self.wait((68, 16), pre="s_waitcnt vmcnt(0)")
        self.stamp(28)
        HF = 16; D = 4
        self.vq_reset()
        def hload(ks):
            out = []
            for i in range(2):
                F = HF + (i*12 + ks)*4
                if ks and (ks & 3) == 0: out.append(f"s_add_u32 s{80+i}, s{80+i}, 4096")
                out.append(f"buffer_load_dwordx4 v[{F}:{F+3}], v2, {srd(rWS)}, s{80+i} offen offset:{(ks & 3)*1024} sc1")
            return out
        for ks in range(D):
            for x in hload(ks): a(x)
            self.vq_add(("h", ks), 2, 2)
        ACC = 152; WF = 112
        def wreads(ks):
            out = []
            for n in range(5):
                off = SL[ks]*1024 + n*1024
                b, lo = off >> 16, off & 0xffff
                out.append(f"ds_read_b128 v[{WF+(ks&1)*20+n*4}:{WF+(ks&1)*20+n*4+3}], v{(13, 14, 12)[b]} offset:{lo}")
            return out
        self.stamp(29)
        for x in wreads(0): a(x)
        for ks in range(12):
            self.vq_wait(("h", ks))
            if ks == 3:
                a("s_barrier")
                self.bulk_dma(84, 160*1024, 80*1024, 20)
                self.bulk_dma(84, 180*1024, 0, 60)
                self.vq[-1] = ("late", self.vq[-1][1], self.vq[-1][2])
            if ks == 7:
                self.vq_wait("late", lgkm=False) if True else None
                a("s_barrier")
            rd = wreads(ks + 1) if ks < 11 else []
            if ks + D < 12:
                rd = rd + hload(ks + D); self.vq_add(("h", ks + D), 2, 2)
            k = 0
            for i in range(2):
                for n in range(5):
                    d = ACC + (i*5 + n)*4
                    W = WF + (ks & 1)*20 + n*4; H = HF + (i*12 + ks)*4
                    c = "0" if ks == 0 else f"v[{d}:{d+3}]"
                    a(f"v_mfma_f32_16x16x32_bf16 v[{d}:{d+3}], v[{W}:{W+3}], v[{H}:{H+3}], {c}")
                    if k < len(rd): a(rd[k]); k += 1
        self.stamp(30)
        a("s_barrier")
        lend = self.ksplit_reduce(ACC, sKQ, sMH, 0)
        a("v_mul_u32_u24 v12, 1280, v4")
        a("v_lshl_add_u32 v12, v3, 3, v12")
        a(f"s_mul_i32 s{T0}, s77, {16*1280}")
        a(f"s_mul_i32 s{T1}, s{sC8}, 160")
        a(f"s_add_u32 s79, s{T0}, s{T1}")
        for n in range(5):
            d = ACC + n*4
            for p in range(2):
                for src in (XR, B2):
                    x = src + 2*n + p
                    a(f"v_lshlrev_b32 v20, 16, v{x}")
                    a(f"v_and_b32 v21, 0xffff0000, v{x}")
                    a(f"v_pk_add_f32 v[{d+2*p}:{d+2*p+1}], v[{d+2*p}:{d+2*p+1}], v[20:21]")
            a(f"v_cvt_pk_bf16_f32 v{d}, v{d}, v{d+1}")
            a(f"v_cvt_pk_bf16_f32 v{d+1}, v{d+2}, v{d+3}")
            a(f"buffer_store_dwordx2 v[{d}:{d+1}], v12, {srd(rOUT)}, s79 offen offset:{n*32}")
        a.label(lend)
        self.stamp(31)
    def build(self):
        a = self.a
        self.prologue()
        self.p1()
        if self.stop_after != "p1":
            for n in ("p1b", "pO", "p2", "p3", "p4"):
                getattr(self, n)()
                if self.stop_after == n: break
        self.dump_stamps()
        a.label("L_end")
        a("s_endpgm")
        hdr = open(os.path.join(os.path.dirname(os.path.abspath(__file__)), "header.txt")).read()
        tail = f"""
.section .rodata,"a"
.p2align 6
.amdhsa_kernel {NAME}_kernel
  .amdhsa_next_free_vgpr 256
  .amdhsa_next_free_sgpr 102
  .amdhsa_accum_offset 256
  .amdhsa_group_segment_fixed_size 0
  .amdhsa_kernarg_size 88
  .amdhsa_user_sgpr_count 2
  .amdhsa_user_sgpr_kernarg_segment_ptr 1
  .amdhsa_system_sgpr_workgroup_id_x 1
.end_amdhsa_kernel
"""
        return hdr + self.a.text() + tail

if __name__ == "__main__":
    import argparse
    ap = argparse.ArgumentParser()
    ap.add_argument("-o", default="cdna_kernels/%s.s" % NAME)
    ap.add_argument("--gmode", action="store_true")
    ap.add_argument("--stop", default=None)
    ap.add_argument("--timing", action="store_true")
    args = ap.parse_args()
    g = Gen(stop_after=args.stop, gmode=args.gmode, timing=args.timing)
    s = g.build()
    open(args.o, "w").write(s)
    print("wrote", args.o, len(s), "bytes; nops inserted:", g.a.nnop)
```

```python
import sys, os, struct
sys.path.insert(0, os.path.dirname(os.path.abspath(__file__)))
from asmlib import Asm

NAME = "sequential_preLN__linear_attn_block__mixer_channel_mlp__prompt"
def f32(x): return "0x%08x" % struct.unpack("<I", struct.pack("<f", x))[0]

F_XCC = 0x0000
F_S1  = 0x1000
F_S2  = 0x2000
F_S3  = 0x3000
F_S4  = 0x4000
F_S5  = 0x5000
F_RPO = 0x6000
F_RPU = 0x6108
PQ    = 0x100000
PK    = 0x400000
VV    = 0x700000
KVP   = 0xA00000
OB    = 0xB00000
HB    = 0xE00000
ST2   = 0x1100000
HH    = 0x1200000
WOF   = 0x1800000
W1F   = 0x1900000
W2F   = 0x1C00000
CS1P  = 0x1F00000
WS_SIZE = 0x10000000
K1024 = 1024

sX, sJ, sRB, sCT, sW, sEP, sMODE, sXCC = 4, 5, 6, 7, 8, 9, 10, 11
T0, T1, T2, T3 = 12, 13, 14, 15
pX, pWQKV, pWO, pBX, pW1, pB1, pW2, pB2 = 16, 18, 20, 22, 24, 26, 28, 30
pOUT, pDBG, pWS = 32, 34, 36
rX, rWQKV, rWS, rOUT, rDBG, rW, rB = 40, 44, 48, 52, 56, 60, 64
SYNCW = 8
VST, VT0 = 167, 160

def srd(r): return f"s[{r}:{r+3}]"

class Gen:
    def __init__(self, stop_after=None, gmode=False, timing=False):
        self.a = Asm()
        self.stop_after = stop_after
        self.gmode = gmode
        self.timing = timing
        self.uid = 0
        self.code_pf = True

    def lab(self, base):
        self.uid += 1
        return f"L_{base}_{self.uid}"

    def hstore(self, text):
        a = self.a
        if self.gmode:
            a(text + " sc1"); return
        l1, l2 = self.lab("hs"), self.lab("hs")
        a(f"s_cmp_eq_u32 s{sMODE}, 0")
        a(f"s_cbranch_scc1 {l1}")
        a(text)
        a(f"s_branch {l2}")
        a.label(l1)
        a(text + " sc1")
        a.label(l2)

    def stamp(self, idx):
        if not self.timing: return
        a = self.a
        a("s_memtime s[100:101]")
        a("s_waitcnt lgkmcnt(0)")
        a(f"v_writelane_b32 v167, s100, {idx}")

    def dump_stamps(self):
        if not self.timing: return
        a = self.a
        lab, l2 = self.lab("nostamp"), self.lab("nostamp")
        a("s_mov_b32 s100, 0x10000")
        a(f"s_cmp_eq_u32 s{sW}, 0")
        a(f"s_cbranch_scc1 {l2}")
        a("s_mov_b32 s100, 0x20000")
        a(f"s_cmp_eq_u32 s{sW}, {SYNCW}")
        a(f"s_cbranch_scc1 {l2}")
        a("s_mov_b32 s100, 0x30000")
        a(f"s_cmp_lg_u32 s{sW}, 9")
        a(f"s_cbranch_scc1 {lab}")
        a.label(l2)
        a("s_lshl_b32 s101, s2, 8")
        a("s_add_u32 s100, s100, s101")
        a("s_mov_b64 exec, -1")
        a("v_lshlrev_b32 v166, 2, v1")
        a(f"buffer_store_dword v167, v166, {srd(rWS)}, s100 offen")
        a.label(lab)

    def mk_srd(self, r, p, size):
        a = self.a
        a(f"s_mov_b32 s{r}, s{p}")
        a(f"s_mov_b32 s{r+1}, s{p+1}")
        a(f"s_mov_b32 s{r+2}, {size}")
        a(f"s_mov_b32 s{r+3}, 0x20000")

    def prologue(self):
        a = self.a
        a("s_cmp_ge_u32 s2, 256")
        a("s_cbranch_scc1 L_end")
        a("s_load_dwordx16 s[16:31], s[0:1], 0")
        a("s_load_dwordx4 s[32:35], s[0:1], 64")
        a("s_load_dwordx2 s[36:37], s[0:1], 80")
        a(f"s_and_b32 s{sX}, s2, 7")
        a(f"s_lshr_b32 s{sJ}, s2, 3")
        a(f"s_lshr_b32 s{sRB}, s{sJ}, 4")
        a(f"s_and_b32 s{sCT}, s{sJ}, 15")
        a(f"s_getreg_b32 s{sXCC}, hwreg(HW_REG_XCC_ID)")
        a(f"s_and_b32 s{sXCC}, s{sXCC}, 7")
        a(f"s_mov_b32 s{sMODE}, 0")
        a(f"s_mov_b32 s{sEP}, 0")
        a("v_and_b32 v1, 63, v0")
        a("v_lshrrev_b32 v5, 6, v0")
        a("v_lshlrev_b32 v2, 4, v1")
        a(f"v_readfirstlane_b32 s{sW}, v5")
        a("v_lshrrev_b32 v3, 4, v1")
        a("v_and_b32 v4, 15, v1")
        if self.timing: a("v_mov_b32 v167, 0")
        self.stamp(0)
        if self.code_pf:
            lab = self.lab("cpf")
            a("s_getpc_b64 s[38:39]")
            a(f"s_lshl_b32 s3, s{sJ}, 3")
            a(f"s_add_u32 s3, s3, s{sW}")
            a(f"s_cmp_ge_u32 s3, ((L_end-{NAME}_kernel)>>10)")
            a(f"s_cbranch_scc1 {lab}")
            a("s_lshl_b32 s3, s3, 10")
            a("v_add_u32 v6, s3, v2")
            a("global_load_dwordx4 v[148:151], v6, s[38:39]")
            a.label(lab)
        a("s_waitcnt lgkmcnt(0)")
        self.mk_srd(rX, pX, 2048 * 1280)
        self.mk_srd(rWQKV, pWQKV, 640 * 3840)
        self.mk_srd(rWS, pWS, WS_SIZE)
        self.mk_srd(rOUT, pOUT, 2048 * 1280)
        self.mk_srd(rDBG, pDBG, 256)

    def spin_guard(self):
        a = self.a
        a("s_add_u32 s99, s99, 1")
        a("s_cmp_gt_u32 s99, 0x40000")
        a("s_cbranch_scc1 L_end")

    def make_epoch(self):
        a = self.a
        l0 = self.lab("ep")
        a(f"s_xor_b32 s{T0}, s{sW}, {SYNCW}")
        a(f"s_or_b32 s{T0}, s2, s{T0}")
        a(f"s_cmp_lg_u32 s{T0}, 0")
        a(f"s_cbranch_scc1 {l0}")
        a("s_memrealtime s[12:13]")
        a("s_waitcnt lgkmcnt(0)")
        a(f"s_and_b32 s{T0}, s{T0}, 0xfffffff0")
        a(f"s_or_b32 s{T0}, s{T0}, 8")
        a(f"v_mov_b32 v10, s{T0}")
        a("v_mov_b32 v11, 0")
        a(f"buffer_store_dword v10, v11, {srd(rDBG)}, 0 offen sc1")
        a.label(l0)

    def epoch_issue(self):
        a = self.a
        lab = self.lab("ei")
        a(f"s_cmp_lg_u32 s{sW}, {SYNCW}")
        a(f"s_cbranch_scc1 {lab}")
        a("v_mov_b32 v163, 0")
        a(f"buffer_load_dword v160, v163, {srd(rDBG)}, 0 offen sc1")
        a.label(lab)

    def epoch_take(self, blocking):
        a = self.a
        lab, l1, l2 = self.lab("et"), self.lab("et"), self.lab("et")
        a(f"s_cmp_lg_u32 s{sW}, {SYNCW}")
        a(f"s_cbranch_scc1 {lab}")
        a(f"s_cmp_lg_u32 s{sEP}, 0")
        a(f"s_cbranch_scc1 {lab}")
        a(f"v_readfirstlane_b32 s{sEP}, v160")
        if blocking:
            a("s_mov_b32 s99, 0")
            a.label(l1)
            a(f"s_cmp_lg_u32 s{sEP}, 0")
            a(f"s_cbranch_scc1 {l2}")
            self.spin_guard()
            a("v_mov_b32 v163, 0")
            a(f"buffer_load_dword v160, v163, {srd(rDBG)}, 0 offen sc1")
            a("s_waitcnt vmcnt(0)")
            a(f"v_readfirstlane_b32 s{sEP}, v160")
            a(f"s_branch {l1}")
            a.label(l2)
        else:
            a(f"s_cmp_eq_u32 s{sEP}, 0")
            a(f"s_cbranch_scc1 {lab}")
        a(f"s_lshl_b32 s{T0}, s{sX}, 7")
        a(f"s_lshl_b32 s{T1}, s{sJ}, 2")
        a(f"s_add_u32 s{T0}, s{T0}, s{T1}")
        if F_XCC: a(f"s_add_u32 s{T0}, s{T0}, {F_XCC}")
        self.flag_store(T0, glob=True)
        a.label(lab)

    def poll(self, off_sgpr, n):
        a = self.a
        lab = self.lab("wf")
        a(f"v_min_u32 v163, {n-1}, v1")
        a("v_lshlrev_b32 v163, 2, v163")
        a("s_mov_b32 s99, 0")
        a.label(lab)
        self.spin_guard()
        a(f"buffer_load_dword v164, v163, {srd(rWS)}, s{off_sgpr} offen sc1")
        a("s_waitcnt vmcnt(0)")
        a("v_and_b32 v165, -8, v164")
        a(f"v_cmp_ne_u32 vcc, s{sEP}, v165")
        a("s_nop 4")
        a(f"s_cbranch_vccnz {lab}")

    def poll_multi(self, sets):
        a = self.a
        lab = self.lab("wf")
        regs = [(163, 164), (161, 162), (155, 160)]
        for (off, n), (ra, rd) in zip(sets, regs):
            a(f"v_min_u32 v{ra}, {n-1}, v1")
            a(f"v_lshlrev_b32 v{ra}, 2, v{ra}")
        a("s_mov_b32 s99, 0")
        a.label(lab)
        self.spin_guard()
        for (off, n), (ra, rd) in zip(sets, regs):
            a(f"buffer_load_dword v{rd}, v{ra}, {srd(rWS)}, s{off} offen sc1")
        a("s_waitcnt vmcnt(0)")
        for k, ((off, n), (ra, rd)) in enumerate(zip(sets, regs)):
            a(f"v_and_b32 v165, -8, v{rd}")
            a(f"v_cmp_ne_u32 {'vcc' if k == 0 else 's[12:13]'}, s{sEP}, v165")
            if k: a("s_or_b64 vcc, vcc, s[12:13]")
        a("s_nop 4")
        a(f"s_cbranch_vccnz {lab}")

    def poll_s2_rp(self, off_s2, n=8):
        a = self.a
        lab = self.lab("wf")
        a(f"v_min_u32 v163, {n-1}, v1")
        a("v_lshlrev_b32 v163, 2, v163")
        a("v_min_u32 v161, 59, v1")
        a("v_lshlrev_b32 v161, 4, v161")
        a(f"s_mov_b32 s14, {F_RPU + 50*4}")
        a("s_mov_b32 s99, 0")
        a.label(lab)
        self.spin_guard()
        a(f"buffer_load_dword v164, v163, {srd(rWS)}, s{off_s2} offen sc1")
        a(f"buffer_load_dwordx4 v[156:159], v161, {srd(rWS)}, s14 offen sc1")
        a("s_waitcnt vmcnt(0)")
        a("v_and_b32 v165, -8, v164")
        a(f"v_cmp_ne_u32 vcc, s{sEP}, v165")
        for r in range(4):
            a(f"v_and_b32 v165, -8, v{156+r}")
            a(f"v_cmp_ne_u32 s[12:13], s{sEP}, v165")
            a("s_or_b64 vcc, vcc, s[12:13]")
        a("s_nop 4")
        a(f"s_cbranch_vccnz {lab}")

    def poll_s1_rp(self, off_s1):
        a = self.a
        lab = self.lab("wf")
        a("v_min_u32 v163, 31, v1")
        a("v_lshlrev_b32 v163, 2, v163")
        a("v_min_u32 v161, 59, v1")
        a("v_lshlrev_b32 v161, 4, v161")
        a("v_min_u32 v160, 15, v1")
        a("v_lshlrev_b32 v160, 2, v160")
        a(f"s_mov_b32 s14, {F_RPU + 50*4}")
        a(f"s_mov_b32 s15, {F_RPO}")
        a("s_mov_b32 s99, 0")
        a.label(lab)
        self.spin_guard()
        a(f"buffer_load_dword v164, v163, {srd(rWS)}, s{off_s1} offen sc1")
        a(f"buffer_load_dwordx4 v[156:159], v161, {srd(rWS)}, s14 offen sc1")
        a(f"buffer_load_dword v162, v160, {srd(rWS)}, s15 offen sc1")
        a("s_waitcnt vmcnt(0)")
        a("v_and_b32 v165, -8, v164")
        a(f"v_cmp_ne_u32 vcc, s{sEP}, v165")
        for r in (156, 157, 158, 159, 162):
            a(f"v_and_b32 v165, -8, v{r}")
            a(f"v_cmp_ne_u32 s[12:13], s{sEP}, v165")
            a("s_or_b64 vcc, vcc, s[12:13]")
        a("s_nop 4")
        a(f"s_cbranch_vccnz {lab}")

    def wait(self, *flagsets, pre=None):
        a = self.a
        lab = self.lab("w")
        a(f"s_cmp_lg_u32 s{sW}, {SYNCW}")
        a(f"s_cbranch_scc1 {lab}")
        if len(flagsets) == 1: self.poll(*flagsets[0])
        else: self.poll_multi(flagsets)
        a.label(lab)
        if pre: a(pre)
        a("s_barrier")

    def prio_young(self, p=1):
        a = self.a
        lab = self.lab("pr")
        a(f"s_cmp_lt_u32 s{sW}, 4")
        a(f"s_cbranch_scc1 {lab}")
        a(f"s_setprio {p}")
        a.label(lab)

    def flag_store(self, off_sgpr, glob=False):
        a = self.a
        lab = self.lab("sig")
        a(f"s_cmp_lg_u32 s{sW}, {SYNCW}")
        a(f"s_cbranch_scc1 {lab}")
        a(f"s_or_b32 s{T3}, s{sEP}, s{sXCC}")
        a(f"v_mov_b32 v164, s{T3}")
        a("v_mov_b32 v163, 0")
        a("s_mov_b64 exec, 1")
        if glob: a(f"buffer_store_dword v164, v163, {srd(rWS)}, s{off_sgpr} offen sc1")
        else: self.hstore(f"buffer_store_dword v164, v163, {srd(rWS)}, s{off_sgpr} offen")
        a("s_mov_b64 exec, -1")
        a.label(lab)

    def signal(self, off_sgpr, glob=False, pre="s_waitcnt vmcnt(0)"):
        a = self.a
        if pre: a(pre)
        a("s_barrier")
        self.flag_store(off_sgpr, glob)

    def vq_reset(self): self.vq = []
    def vq_add(self, tag, n_sync=1, n_other=1): self.vq.append((tag, n_sync, n_other))
    def vq_wait(self, tag, lgkm=True):
        a = self.a
        idx = max(i for i, t in enumerate(self.vq) if t[0] == tag)
        ns = sum(t[1] for t in self.vq[idx+1:]); no = sum(t[2] for t in self.vq[idx+1:])
        ns, no = min(ns, 63), min(no, 63)
        lg = " lgkmcnt(0)" if lgkm else ""
        if ns == no:
            a(f"s_waitcnt vmcnt({ns}){lg}")
        else:
            l1, l2 = self.lab("vw"), self.lab("vw")
            a(f"s_cmp_eq_u32 s{sW}, {SYNCW}")
            a(f"s_cbranch_scc1 {l1}")
            a(f"s_waitcnt vmcnt({no}){lg}")
            a(f"s_branch {l2}")
            a.label(l1)
            a(f"s_waitcnt vmcnt({ns}){lg}")
            a.label(l2)

    def bulk_dma(self, src_sgpr, src_off, lds_base, nblk, tmp=(T0, T1), w0=0, nw=7):
        a = self.a
        lab = self.lab("bd")
        a(f"s_sub_u32 s{tmp[0]}, s{sW}, {w0}")
        a(f"s_cmp_ge_u32 s{tmp[0]}, {nw}")
        a(f"s_cbranch_scc1 {lab}")
        a(f"s_mov_b32 s98, s{tmp[0]}")
        a(f"s_lshl_b32 s{tmp[0]}, s{tmp[0]}, 10")
        a(f"s_add_u32 s{tmp[1]}, s{tmp[0]}, s{src_sgpr}")
        if src_off: a(f"s_add_u32 s{tmp[1]}, s{tmp[1]}, {src_off}")
        nit = (nblk + nw - 1) // nw
        for k in range(nit):
            l2 = None
            if nw*k + nw - 1 >= nblk:
                l2 = self.lab("bd")
                a(f"s_cmp_ge_u32 s98, {nblk - nw*k}")
                a(f"s_cbranch_scc1 {l2}")
            a(f"s_add_u32 m0, s{tmp[0]}, {lds_base + nw*k*1024}")
            a(f"buffer_load_dwordx4 v2, {srd(rWS)}, s{tmp[1]} offen sc1 lds")
            if k + 1 < nit: a(f"s_add_u32 s{tmp[1]}, s{tmp[1]}, {nw*1024}")
            if l2: a.label(l2)
        a.label(lab)
        if getattr(self, "vq", None) is not None:
            self.vq_add("bulk", 0, (nblk // nw) if (w0 == 0 and nw == 7) else 0)
        return nit
    def bar(self, name):
        self.bars.append(name)
        self.a("s_barrier")

    def sdiv(self, dst, src, d):
        self.a(f"s_mul_hi_u32 s{dst}, s{src}, {(2**32 + d - 1)//d}")
    def sdivmod(self, q, r, src, d):
        self.sdiv(q, src, d)
        self.a(f"s_mul_i32 s{r}, s{q}, {d}")
        self.a(f"s_sub_u32 s{r}, s{src}, s{r}")

    L_SUM, L_SQ, L_CS, L_MODE = 0, 512, 1024, 2560
    NST = 10; NSLOT = 4; SLOT = 32768

    def c_p1(self):
        a = self.a
        NST, NSLOT, SLOT = self.NST, self.NSLOT, self.SLOT
        a(f"s_cmp_eq_u32 s{sCT}, 15")
        a("s_cbranch_scc1 L_c_spare")
        sWR, sWC = 81, 82
        a(f"s_lshr_b32 s{sWR}, s{sW}, 1")
        a(f"s_and_b32 s{sWC}, s{sW}, 1")
        vAa = [[[16 + (ks*2 + i)*2 + b for b in range(2)] for i in range(2)] for ks in range(2)]
        vBa = [[24 + t*2 + b for b in range(2)] for t in range(4)]
        a(f"s_lshl_b32 s{T0}, s{sWR}, 12")
        a(f"s_lshl_b32 s{T1}, s{sWC}, 11")
        a(f"s_add_u32 s{T2}, s{T0}, s{T1}")
        a(f"s_sub_u32 s{T3}, s{T0}, s{T1}")
        a(f"s_add_u32 s{T3}, s{T3}, 2048")
        a("v_and_b32 v10, 7, v4")
        for ks in range(2):
            a(f"v_or_b32 v11, {4*ks}, v3" if ks else "v_mov_b32 v11, v3")
            a("v_xor_b32 v11, v11, v10")
            a("v_lshlrev_b32 v11, 4, v11")
            a("v_lshl_add_u32 v11, v4, 7, v11")
            for i, sreg in ((0, T2), (1, T3)):
                a(f"v_add_u32 v{vAa[ks][i][0]}, s{sreg}, v11")
                a(f"v_add_u32 v{vAa[ks][i][1]}, 0x10000, v{vAa[ks][i][0]}")
        a("v_lshrrev_b32 v10, 2, v4")
        a("v_and_b32 v11, 3, v4")
        a("v_and_b32 v12, 1, v3")
        a("v_lshlrev_b32 v12, 3, v12")
        a("v_lshl_add_u32 v12, v10, 1, v12")
        a("v_lshrrev_b32 v13, 1, v11")
        a("v_xor_b32 v12, v12, v13")
        a("v_lshl_add_u32 v13, v3, 3, v10")
        a("v_lshlrev_b32 v13, 8, v13")
        a("v_and_b32 v14, 1, v11")
        a("v_lshl_add_u32 v13, v14, 3, v13")
        a("v_add_u32 v13, 16384, v13")
        ONES = 40
        for i in range(4): a(f"v_mov_b32 v{ONES+i}, 0x3f803f80")
        FR = 44
        ACC = 96; GRAM = 128; SUM = 132; CSUM = 136
        def fa(buf, i): r = FR + buf*24 + i*4; return f"v[{r}:{r+3}]"
        def fb(buf, t): r = FR + buf*24 + 8 + t*4; return f"v[{r}:{r+3}]"
        def reads(u):
            st, ks = u >> 1, u & 1
            off = (st % NSLOT) * SLOT
            b, lo = off >> 16, off & 0xffff
            buf = u & 1
            out = []
            for i in range(2):
                out.append(f"ds_read_b128 {fa(buf, i)}, v{vAa[ks][i][b]} offset:{lo}")
            for t in range(4):
                for hf in range(2):
                    r0 = FR + buf*24 + 8 + t*4 + hf*2
                    out.append(f"ds_read_b64_tr_b16 v[{r0}:{r0+1}], v{vBa[t][b]} offset:{lo + (32*ks + 4*hf)*256}")
            return out
        ones = f"v[{ONES}:{ONES+3}]"
        saved = None
        for isq in (True, False):
            if isq:
                a(f"s_cmp_lt_u32 s{sCT}, 5")
                a("s_cbranch_scc0 L_p1_kv")
                saved = list(self.bars)
            else:
                a.label("L_p1_kv")
                a.flush_hazards(4)
                self.bars = list(saved)
            for t in range(4):
                if isq:
                    a(f"s_xor_b32 s{T0}, s{sWR}, {t}")
                    a(f"s_lshl_b32 s{T1}, s{sWC}, 2")
                    a(f"s_add_u32 s{T0}, s{T0}, s{T1}")
                else:
                    a(f"s_and_b32 s{T0}, s{sWR}, 1")
                    a(f"s_xor_b32 s{T0}, s{T0}, {t & 1}")
                    a(f"s_lshl_b32 s{T1}, s{sWC}, 1")
                    a(f"s_add_u32 s{T0}, s{T0}, s{T1}")
                    if t & 2: a(f"s_add_u32 s{T0}, s{T0}, 4")
                a(f"s_mov_b32 s{84+t}, s{T0}")
                a(f"s_lshl_b32 s{T0}, s{T0}, 1")
                a(f"v_xor_b32 v14, s{T0}, v12")
                a(f"v_lshl_add_u32 v{vBa[t][0]}, v14, 4, v13")
                a(f"v_add_u32 v{vBa[t][1]}, 0x10000, v{vBa[t][0]}")
            self.stamp(2)
            self.bar("B0")
            self.stamp(3)
            for x in reads(0): a(x)
            for u in range(2*NST):
                st, ks = u >> 1, u & 1
                buf = u & 1; first = (u == 0)
                def C(d): return "0" if first else f"v[{d}:{d+3}]"
                a("s_waitcnt lgkmcnt(0)")
                if ks == 1 and st + 1 < NST:
                    self.bar(f"B{st+1}")
                if u in (2, 6, 10, 14, 18): self.stamp(4 + (u - 2)//4)
                rd = reads(u + 1) if u + 1 < 2*NST else []
                mf = []
                for i in range(2):
                    for t in range(4):
                        d = ACC + (i*4 + t)*4
                        if isq: mf.append(f"v_mfma_f32_16x16x32_bf16 v[{d}:{d+3}], {fb(buf,t)}, {fa(buf,i)}, {C(d)}")
                        else:   mf.append(f"v_mfma_f32_16x16x32_bf16 v[{d}:{d+3}], {fa(buf,i)}, {fb(buf,t)}, {C(d)}")
                mf.append(f"v_mfma_f32_16x16x32_bf16 v[{GRAM}:{GRAM+3}], {fa(buf,0)}, {fa(buf,0)}, {C(GRAM)}")
                mf.append(f"v_mfma_f32_16x16x32_bf16 v[{SUM}:{SUM+3}], {fa(buf,0)}, {ones}, {C(SUM)}")
                ri = 0
                for i, m in enumerate(mf):
                    a(m)
                    if ri < len(rd): a(rd[ri]); ri += 1
                while ri < len(rd): a(rd[ri]); ri += 1
                if isq:
                    a(f"v_mfma_f32_16x16x32_bf16 v[{CSUM}:{CSUM+3}], {ones}, {fb(buf,0)}, {C(CSUM)}")
                else:
                    l1, l2 = self.lab("cs"), self.lab("cs")
                    a(f"s_cmp_lt_u32 s{sWR}, 2")
                    a(f"s_cbranch_scc0 {l1}")
                    a(f"v_mfma_f32_16x16x32_bf16 v[{CSUM}:{CSUM+3}], {ones}, {fb(buf,0)}, {C(CSUM)}")
                    a(f"s_branch {l2}")
                    a.label(l1)
                    a(f"v_mfma_f32_16x16x32_bf16 v[{CSUM}:{CSUM+3}], {ones}, {fb(buf,2)}, {C(CSUM)}")
                    a.label(l2)
            self.stamp(9)
            self.c_p1_epilogue(isq, ACC, GRAM, SUM, CSUM, sWR, sWC)
            self.stamp(10)
            a("s_branch L_p1_done")
        gemm_bars = list(self.bars)
        a.label("L_c_spare")
        a.flush_hazards(4)
        self.bars = list(saved[:len(saved)])
        self.c_spare()
        self.spare_bars = list(self.bars)
        self.bars = gemm_bars
        a.label("L_p1_done")
        a.flush_hazards(8)

    def mode_read(self):
        a = self.a
        a(f"v_mov_b32 v15, {self.L_MODE}")
        a("ds_read_b32 v13, v15")
        a("s_waitcnt lgkmcnt(0)")
        a(f"v_readfirstlane_b32 s{sMODE}, v13")
        a(f"s_and_b32 s{sMODE}, s{sMODE}, 1")

    def c_spare(self):
        a = self.a
        self.rp_setup()
        a(f"s_lshl_b32 s69, s{sX}, 1")
        a(f"s_add_u32 s69, s69, s{sRB}")
        a("s_mov_b32 s68, 0")
        lp, lq, ld1, ld2 = self.lab("sp"), self.lab("sp"), self.lab("sp"), self.lab("sp")
        a.label(lp)
        a("s_lshl_b32 s97, s68, 4")
        a("s_add_u32 s97, s97, s69")
        a("s_cmp_ge_u32 s97, 50")
        a(f"s_cbranch_scc1 {ld1}")
        a("s_lshl_b32 s98, s68, 14")
        self.rp_issue_dyn(97, 98, 68)
        a("s_add_u32 s68, s68, 1")
        a("s_cmp_lt_u32 s68, 4")
        a(f"s_cbranch_scc1 {lp}")
        a.label(ld1)
        a("s_waitcnt vmcnt(0)")
        self.bar("SP1")
        a("s_mov_b32 s68, 0")
        a.label(lq)
        a("s_lshl_b32 s97, s68, 4")
        a("s_add_u32 s97, s97, s69")
        a("s_cmp_ge_u32 s97, 50")
        a(f"s_cbranch_scc1 {ld2}")
        a("s_lshl_b32 s98, s68, 14")
        a("s_lshl_b32 s85, s68, 2")
        self.rp_process((98,), (85,))
        a("s_add_u32 s68, s68, 1")
        a("s_cmp_lt_u32 s68, 4")
        a(f"s_cbranch_scc1 {lq}")
        a.label(ld2)
        a("s_waitcnt vmcnt(0)")
        self.bar("SP2")
        self.stamp(9)
        self.bar("E1")
        self.bar("E2")
        self.mode_read()

    def c_p1_epilogue(self, isq, ACC, GRAM, SUM, CSUM, sWR, sWC):
        a = self.a
        L_SUM, L_SQ, L_CS, L_MODE = self.L_SUM, self.L_SQ, self.L_CS, self.L_MODE
        self.bar("E1")
        a(f"s_lshl_b32 s{T0}, s{sWR}, 1")
        a(f"s_add_u32 s{T0}, s{T0}, s{sWC}")
        a(f"s_lshl_b32 s{T0}, s{T0}, 6")
        a("s_mov_b32 s88, 0x22222222\ns_mov_b32 s89, 0x22222222")
        a("s_mov_b32 s90, 0x44444444\ns_mov_b32 s91, 0x44444444")
        a("s_mov_b32 s92, 0x88888888\ns_mov_b32 s93, 0x88888888")
        a("v_lshlrev_b32 v10, 2, v4")
        a(f"v_add_u32 v10, s{T0}, v10")
        a("v_lshlrev_b32 v11, 4, v3")
        a(f"v_add_u32 v11, s{T0}, v11")
        G = GRAM
        a(f"v_cndmask_b32 v14, v{G}, v{G+1}, s[88:89]")
        a(f"v_cndmask_b32 v14, v14, v{G+2}, s[90:91]")
        a(f"v_cndmask_b32 v14, v14, v{G+3}, s[92:93]")
        if isq: a(f"s_lshl_b32 s{T1}, s84, 6")
        else:
            a(f"s_cmp_lt_u32 s{sWR}, 2")
            a(f"s_cselect_b32 s{T1}, s84, s86")
            a(f"s_lshl_b32 s{T1}, s{T1}, 6")
        a("v_lshlrev_b32 v12, 2, v4")
        a(f"v_add_u32 v12, s{T1}, v12")
        a("s_mov_b32 exec_lo, 0x00F0000F\ns_mov_b32 exec_hi, 0xF0000F00")
        a(f"ds_write_b32 v10, v14 offset:{L_SQ}")
        a("s_mov_b32 exec_lo, 0x00010001\ns_mov_b32 exec_hi, 0x00010001")
        a(f"ds_write_b128 v11, v[{SUM}:{SUM+3}] offset:{L_SUM}")
        a("s_mov_b32 exec_lo, 0xffff\ns_mov_b32 exec_hi, 0")
        a(f"ds_write_b32 v12, v{CSUM} offset:{L_CS}")
        a("s_mov_b64 exec, -1")
        a("s_waitcnt lgkmcnt(0)")
        self.bar("E2")
        self.stamp(48)
        LOG2E = f32(1.4426950408889634)
        EPS6 = f32(1e-6)
        K640 = f32(1/640)
        a(f"s_mov_b32 s88, {EPS6}\ns_mov_b32 s89, {EPS6}")
        a(f"s_mov_b32 s90, {LOG2E}\ns_mov_b32 s91, {LOG2E}")
        a(f"s_mov_b32 s92, {K640}\ns_mov_b32 s93, {K640}")
        TMP = 16; PKD = 24
        a(f"v_mov_b32 v15, {L_MODE}")
        a("ds_read_b32 v13, v15")
        if not isq:
            M, R, R2, CS = 44, 52, 60, 68
            for i in range(2):
                a(f"s_xor_b32 s{T0}, s{sWC}, {i}")
                a(f"s_lshl_b32 s{T1}, s{sWR}, 1")
                a(f"s_add_u32 s{T0}, s{T0}, s{T1}")
                a(f"s_lshl_b32 s{T0}, s{T0}, 6")
                a("v_lshlrev_b32 v10, 4, v3")
                a(f"v_add_u32 v10, s{T0}, v10")
                a(f"ds_read_b128 v[{M+4*i}:{M+4*i+3}], v10 offset:{L_SUM}")
                a(f"ds_read_b128 v[{R+4*i}:{R+4*i+3}], v10 offset:{L_SQ}")
            for t in range(4):
                a(f"s_lshl_b32 s{T1}, s{84+t}, 6")
                a("v_lshlrev_b32 v12, 2, v4")
                a(f"v_add_u32 v12, s{T1}, v12")
                a(f"ds_read_b32 v{CS+2*t}, v12 offset:{L_CS}")
            a("s_waitcnt lgkmcnt(0)")
            n = 4
        else:
            M, R, R2, CS = 44, 48, 52, 56
            for i in range(2):
                a(f"s_xor_b32 s{T0}, s{sWC}, {i}")
                a(f"s_lshl_b32 s{T1}, s{sWR}, 1")
                a(f"s_add_u32 s{T0}, s{T0}, s{T1}")
                a(f"s_lshl_b32 s{T0}, s{T0}, 6")
                a("v_lshlrev_b32 v10, 2, v4")
                a(f"v_add_u32 v10, s{T0}, v10")
                a(f"ds_read_b32 v{M+2*i}, v10 offset:{L_SUM}")
                a(f"ds_read_b32 v{R+2*i}, v10 offset:{L_SQ}")
            for t in range(4):
                a(f"s_lshl_b32 s{T1}, s{84+t}, 6")
                a("v_lshlrev_b32 v12, 4, v3")
                a(f"v_add_u32 v12, s{T1}, v12")
                a(f"ds_read_b128 v[{CS+4*t}:{CS+4*t+3}], v12 offset:{L_CS}")
            a("s_waitcnt lgkmcnt(0)")
            n = 2
        a(f"v_readfirstlane_b32 s{sMODE}, v13")
        a(f"s_and_b32 s{sMODE}, s{sMODE}, 1")
        for p in range(n):
            mp = f"v[{M+2*p}:{M+2*p+1}]"; rp = f"v[{R+2*p}:{R+2*p+1}]"
            a(f"v_pk_mul_f32 {mp}, {mp}, s[92:93]")
            a(f"v_pk_mul_f32 {rp}, {rp}, s[92:93]")
            a(f"v_pk_fma_f32 {rp}, {mp}, {mp}, {rp} neg_lo:[1,0,0] neg_hi:[1,0,0]")
        for r in range(2*n):
            if isq and (r & 1): continue
            a(f"v_max_f32 v{R+r}, 0, v{R+r}")
            a(f"v_add_f32 v{R+r}, {f32(1e-5)}, v{R+r}")
            a(f"v_rsq_f32 v{R+r}, v{R+r}")
        for p in range(n):
            rp = f"v[{R+2*p}:{R+2*p+1}]"; r2 = f"v[{R2+2*p}:{R2+2*p+1}]"
            a(f"v_pk_mul_f32 {r2}, {rp}, s[90:91]")
        self.stamp(49)
        def phi(A0):
            for r in range(4): a(f"v_min_f32 v{TMP+r}, 0, v{TMP+r}")
            for r in range(4): a(f"v_exp_f32 v{TMP+r}, v{TMP+r}")
            for r in range(4): a(f"v_max_f32 v{A0+r}, {EPS6}, v{A0+r}")
            for r in range(4): a(f"v_add_f32 v{A0+r}, v{A0+r}, v{TMP+r}")
        def cond_swap(pk, sreg_bit):
            lab = self.lab("sw")
            a(f"s_cmp_eq_u32 s{sreg_bit}, 0")
            a(f"s_cbranch_scc1 {lab}")
            a(f"v_swap_b32 v{pk}, v{pk+2}")
            a(f"v_swap_b32 v{pk+1}, v{pk+3}")
            a.label(lab)
        if not isq:
            a(f"s_lshl_b32 s{T0}, s{sX}, 3")
            a(f"s_lshl_b32 s{T1}, s{sRB}, 2")
            a(f"s_add_u32 s{T0}, s{T0}, s{T1}")
            a(f"s_add_u32 s{T0}, s{T0}, s{sWR}")
            a(f"s_mul_i32 s{T0}, s{T0}, 40")
            a(f"s_sub_u32 s{T1}, s{sCT}, 5")
            a(f"s_lshl_b32 s{T1}, s{T1}, 2")
            a(f"s_add_u32 s94, s{T0}, s{T1}")
            for t in range(4):
                isk = t < 2
                pk = PKD + 4*(t & 1)
                for i in range(2):
                    A0 = ACC + (i*4 + t)*4
                    for p in range(2):
                        ap = f"v[{A0+2*p}:{A0+2*p+1}]"
                        mp = f"v[{M+4*i+2*p}:{M+4*i+2*p+1}]"
                        rp = f"v[{R+4*i+2*p}:{R+4*i+2*p+1}]"
                        r2 = f"v[{R2+4*i+2*p}:{R2+4*i+2*p+1}]"
                        cs = f"v[{CS+2*t}:{CS+2*t+1}]"
                        a(f"v_pk_fma_f32 {ap}, {mp}, {cs}, {ap} op_sel_hi:[1,0,1] neg_lo:[1,0,0] neg_hi:[1,0,0]")
                        if isk:
                            a(f"v_pk_mul_f32 v[{TMP+2*p}:{TMP+2*p+1}], {ap}, {r2}")
                            a(f"v_pk_fma_f32 {ap}, {ap}, {rp}, s[88:89]")
                        else:
                            a(f"v_pk_mul_f32 {ap}, {ap}, {rp}")
                    if isk: phi(A0)
                    a(f"v_cvt_pk_bf16_f32 v{pk+2*i}, v{A0}, v{A0+1}")
                    a(f"v_cvt_pk_bf16_f32 v{pk+2*i+1}, v{A0+2}, v{A0+3}")
                cond_swap(pk, sWC)
                a(f"s_and_b32 s{T1}, s{84+t}, 3")
                a(f"s_add_u32 s{T0}, s94, s{T1}")
                a(f"s_lshl_b32 s{T0}, s{T0}, 10")
                a(f"s_add_u32 s{T0}, s{T0}, {PK if isk else VV}")
                self.hstore(f"buffer_store_dwordx4 v[{pk}:{pk+3}], v2, {srd(rWS)}, s{T0} offen")
        else:
            a(f"s_and_b32 s95, s{sWR}, 1")
            for i in range(2):
                for pr in range(2):
                    pk = PKD + 4*(pr & 1)
                    for t2 in range(2):
                        t = 2*pr + t2
                        A0 = ACC + (i*4 + t)*4
                        for p in range(2):
                            ap = f"v[{A0+2*p}:{A0+2*p+1}]"
                            cs = f"v[{CS+4*t+2*p}:{CS+4*t+2*p+1}]"
                            mp = f"v[{M+2*i}:{M+2*i+1}]"
                            rp = f"v[{R+2*i}:{R+2*i+1}]"
                            r2 = f"v[{R2+2*i}:{R2+2*i+1}]"
                            a(f"v_pk_fma_f32 {ap}, {cs}, {mp}, {ap} op_sel_hi:[1,0,1] neg_lo:[1,0,0] neg_hi:[1,0,0]")
                            a(f"v_pk_mul_f32 v[{TMP+2*p}:{TMP+2*p+1}], {ap}, {r2} op_sel_hi:[1,0]")
                            a(f"v_pk_fma_f32 {ap}, {ap}, {rp}, s[88:89] op_sel_hi:[1,0,1]")
                        phi(A0)
                        a(f"v_cvt_pk_bf16_f32 v{pk+2*t2}, v{A0}, v{A0+1}")
                        a(f"v_cvt_pk_bf16_f32 v{pk+2*t2+1}, v{A0+2}, v{A0+3}")
                    cond_swap(pk, 95)
                    a(f"s_lshl_b32 s{T0}, s{sX}, 4")
                    a(f"s_lshl_b32 s{T1}, s{sRB}, 3")
                    a(f"s_add_u32 s{T0}, s{T0}, s{T1}")
                    a(f"s_lshl_b32 s{T1}, s{sWR}, 1")
                    a(f"s_add_u32 s{T0}, s{T0}, s{T1}")
                    a(f"s_xor_b32 s{T1}, s{sWC}, {i}")
                    a(f"s_add_u32 s{T0}, s{T0}, s{T1}")
                    a(f"s_mul_i32 s{T0}, s{T0}, 20")
                    a(f"s_lshl_b32 s{T1}, s{sCT}, 2")
                    a(f"s_add_u32 s{T0}, s{T0}, s{T1}")
                    a(f"s_lshl_b32 s{T1}, s{sWC}, 1")
                    a(f"s_add_u32 s{T0}, s{T0}, s{T1}")
                    a(f"s_lshr_b32 s{T1}, s{sWR}, 1")
                    a(f"s_xor_b32 s{T1}, s{T1}, {pr}")
                    a(f"s_add_u32 s{T0}, s{T0}, s{T1}")
                    a(f"s_lshl_b32 s{T0}, s{T0}, 10")
                    a(f"s_add_u32 s{T0}, s{T0}, {PQ}")
                    self.hstore(f"buffer_store_dwordx4 v[{pk}:{pk+3}], v2, {srd(rWS)}, s{T0} offen")
    RP_V = 224
    def rp_setup(self):
        a = self.a
        self.mk_srd(60, pWO, 640*1280)
        self.mk_srd(64, pW1, 640*3072)
        self.mk_srd(88, pW2, 1536*1280)

    def rp_issue(self, su, lds_base_sgpr, stash_lane):
        a = self.a
        rWO, rW1, rW2 = 60, 64, 88
        sKIND, sCG, sKC = 70, 71, 74
        l1, l2, l3 = self.lab("dc"), self.lab("dc"), self.lab("dc")
        a(f"s_cmp_lt_u32 s{su}, 50")
        a(f"s_cbranch_scc0 {l1}")
        a(f"s_mov_b32 s{sKIND}, 0")
        self.sdivmod(sKC, sCG, su, 10)
        a(f"s_branch {l3}")
        a.label(l1)
        a(f"s_cmp_lt_u32 s{su}, 170")
        a(f"s_cbranch_scc0 {l2}")
        a(f"s_mov_b32 s{sKIND}, 1")
        a(f"s_sub_u32 s75, s{su}, 50")
        self.sdivmod(sKC, sCG, 75, 24)
        a(f"s_branch {l3}")
        a.label(l2)
        a(f"s_mov_b32 s{sKIND}, 2")
        a(f"s_sub_u32 s75, s{su}, 170")
        self.sdivmod(sKC, sCG, 75, 10)
        a.label(l3)
        a("v_lshrrev_b32 v100, 3, v1")
        a("v_and_b32 v101, 7, v1")
        a("v_lshrrev_b32 v102, 1, v100")
        a("v_and_b32 v102, 3, v102")
        a("v_lshlrev_b32 v102, 1, v102")
        a("v_xor_b32 v101, v101, v102")
        a("v_lshlrev_b32 v101, 4, v101")
        for q in range(2):
            a(f"s_lshl_b32 s12, s{sW}, 4")
            a(f"s_add_u32 s12, s12, {8*q}")
            a("v_add_u32 v102, s12, v100")
            lstd, lrow = self.lab("r"), self.lab("r")
            a(f"s_cmp_lg_u32 s{sKIND}, 0")
            a(f"s_cbranch_scc1 {lstd}")
            a(f"s_lshl_b32 s13, s{sKC}, 2")
            a("v_lshrrev_b32 v103, 5, v102")
            a("v_add_u32 v103, s13, v103")
            a("v_and_b32 v104, 31, v102")
            a("v_lshrrev_b32 v105, 4, v104")
            a("v_and_b32 v106, 15, v104")
            a("v_mul_u32_u24 v107, 40, v103")
            a("v_mul_u32_u24 v108, 20, v105")
            a("v_add3_u32 v107, v107, v108, v106")
            a("v_subrev_u32 v108, 16, v103")
            a("v_mul_u32_u24 v108, 160, v108")
            a("v_mul_u32_u24 v109, 80, v105")
            a("v_lshrrev_b32 v110, 2, v106")
            a("v_mul_u32_u24 v110, 20, v110")
            a("v_add3_u32 v108, v108, v109, v110")
            a("v_and_b32 v109, 3, v106")
            a("v_add3_u32 v108, v108, v109, 16")
            a("v_cmp_gt_u32 vcc, 16, v103")
            a("v_cndmask_b32 v103, v108, v107, vcc")
            a(f"s_branch {lrow}")
            a.label(lstd)
            a(f"s_lshl_b32 s13, s{sKC}, 7")
            a("v_add_u32 v103, s13, v102")
            a.label(lrow)
            a(f"s_cmp_eq_u32 s{sKIND}, 1")
            a("s_movk_i32 s13, 1280")
            a("s_cselect_b32 s13, 3072, s13")
            a("v_mul_lo_u32 v103, v103, s13")
            a("v_add_u32 v103, v103, v101")
            a(f"s_lshl_b32 s13, s{sCG}, 7")
            a(f"s_lshl_b32 s14, s{sW}, 11")
            a(f"s_add_u32 s14, s14, s{lds_base_sgpr}")
            a(f"s_add_u32 m0, s14, {q*1024}")
            k0, k1, k2 = self.lab("k"), self.lab("k"), self.lab("k")
            a(f"s_cmp_eq_u32 s{sKIND}, 1")
            a(f"s_cbranch_scc1 {k0}")
            a(f"s_cmp_eq_u32 s{sKIND}, 2")
            a(f"s_cbranch_scc1 {k1}")
            a(f"buffer_load_dwordx4 v103, {srd(rWO)}, s13 offen lds")
            a(f"s_branch {k2}")
            a.label(k0)
            a(f"buffer_load_dwordx4 v103, {srd(rW1)}, s13 offen lds")
            a(f"s_branch {k2}")
            a.label(k1)
            a(f"buffer_load_dwordx4 v103, {srd(rW2)}, s13 offen lds")
            a.label(k2)
        a(f"s_and_b32 s78, s{sW}, 3")
        a(f"s_lshr_b32 s79, s{sW}, 2")
        a(f"s_lshl_b32 s12, s{sCG}, 2")
        a("s_add_u32 s12, s12, s78")
        for e in range(2):
            a(f"s_lshl_b32 s13, s{sKC}, 2")
            a("s_lshl_b32 s14, s79, 1")
            a("s_add_u32 s13, s13, s14")
            if e: a("s_add_u32 s13, s13, 1")
            d0, d1, d2 = self.lab("d"), self.lab("d"), self.lab("d")
            a(f"s_cmp_eq_u32 s{sKIND}, 1")
            a(f"s_cbranch_scc1 {d0}")
            a(f"s_cmp_eq_u32 s{sKIND}, 2")
            a(f"s_cbranch_scc1 {d1}")
            self.sdivmod(3, 83, 12, 5)
            self.sdivmod(92, 93, 13, 10)
            a("s_mul_i32 s3, s3, 100\ns_mul_i32 s93, s93, 10\ns_mul_i32 s92, s92, 5")
            a("s_add_u32 s3, s3, s83\ns_add_u32 s3, s3, s92\ns_add_u32 s3, s3, s93")
            a("s_lshl_b32 s3, s3, 10")
            a(f"s_add_u32 s3, s3, {WOF}")
            a(f"s_branch {d2}")
            a.label(d0)
            self.sdivmod(3, 83, 12, 6)
            self.sdivmod(92, 93, 13, 10)
            a("s_mul_i32 s3, s3, 120\ns_mul_i32 s93, s93, 12\ns_mul_i32 s92, s92, 6")
            a("s_add_u32 s3, s3, s83\ns_add_u32 s3, s3, s92\ns_add_u32 s3, s3, s93")
            a("s_lshl_b32 s3, s3, 10")
            a(f"s_add_u32 s3, s3, {W1F}")
            a(f"s_branch {d2}")
            a.label(d1)
            self.sdivmod(3, 83, 12, 5)
            self.sdivmod(92, 93, 13, 12)
            a("s_mul_i32 s3, s3, 240\ns_mul_i32 s93, s93, 20\ns_mul_i32 s92, s92, 5")
            a("s_add_u32 s3, s3, s83\ns_add_u32 s3, s3, s92\ns_add_u32 s3, s3, s93")
            a("s_lshl_b32 s3, s3, 10")
            a(f"s_add_u32 s3, s3, {W2F}")
            a.label(d2)
            a(f"v_writelane_b32 v122, s3, {stash_lane + e}")
        a(f"s_lshl_b32 s13, s{sKC}, 1")
        a("s_add_u32 s13, s13, s79")
        a("s_mul_i32 s13, s13, 1536")
        a("s_lshl_b32 s14, s12, 4")
        a("s_add_u32 s13, s13, s14")
        a("s_lshl_b32 s13, s13, 2")
        a(f"s_add_u32 s13, s13, {CS1P}")
        a(f"s_cmp_eq_u32 s{sKIND}, 1")
        a("s_cselect_b32 s13, s13, 0")
        a(f"v_writelane_b32 v122, s13, {stash_lane + 2}")

    def rp_process(self, lds_base, stash_lane):
        a = self.a
        a("v_lshrrev_b32 v100, 2, v4")
        a("v_and_b32 v101, 3, v4")
        a("v_lshl_add_u32 v102, v3, 2, v100")
        a("v_lshrrev_b32 v103, 1, v102")
        a("v_and_b32 v103, 3, v103")
        a("v_lshlrev_b32 v103, 1, v103")
        a(f"s_and_b32 s12, s{sW}, 3")
        a("s_lshl_b32 s12, s12, 1")
        a("v_lshrrev_b32 v104, 1, v101")
        a("v_or_b32 v104, s12, v104")
        a("v_xor_b32 v104, v104, v103")
        a("v_lshlrev_b32 v104, 4, v104")
        a("v_lshl_add_u32 v104, v102, 7, v104")
        a("v_and_b32 v101, 1, v101")
        a("v_lshl_add_u32 v104, v101, 3, v104")
        a(f"s_lshr_b32 s12, s{sW}, 2")
        a("s_lshl_b32 s12, s12, 13")
        if isinstance(lds_base, int): a(f"s_add_u32 s12, s12, {lds_base}")
        else: a(f"s_add_u32 s12, s12, s{lds_base[0]}")
        a("v_add_u32 v104, s12, v104")
        a("ds_read_b64_tr_b16 v[106:107], v104")
        a("ds_read_b64_tr_b16 v[108:109], v104 offset:2048")
        a("ds_read_b64_tr_b16 v[110:111], v104 offset:4096")
        a("ds_read_b64_tr_b16 v[112:113], v104 offset:6144")
        if isinstance(stash_lane, int):
            a(f"v_readlane_b32 s12, v122, {stash_lane}")
            a(f"v_readlane_b32 s13, v122, {stash_lane+1}")
            a(f"v_readlane_b32 s14, v122, {stash_lane+2}")
        else:
            a(f"v_readlane_b32 s12, v122, s{stash_lane[0]}")
            a(f"s_add_u32 s15, s{stash_lane[0]}, 1")
            a(f"v_readlane_b32 s13, v122, s15")
            a(f"s_add_u32 s15, s{stash_lane[0]}, 2")
            a(f"v_readlane_b32 s14, v122, s15")
        a("s_waitcnt lgkmcnt(0)")
        a(f"buffer_store_dwordx4 v[106:109], v2, {srd(rWS)}, s12 offen sc1")
        a(f"buffer_store_dwordx4 v[110:113], v2, {srd(rWS)}, s13 offen sc1")
        lc = self.lab("cs")
        a("s_cmp_eq_u32 s14, 0")
        a(f"s_cbranch_scc1 {lc}")
        for i in range(4): a(f"v_mov_b32 v{114+i}, 0x3f803f80")
        a("v_mfma_f32_16x16x32_bf16 v[118:121], v[106:109], v[114:117], 0")
        a("v_mfma_f32_16x16x32_bf16 v[118:121], v[110:113], v[114:117], v[118:121]")
        a("v_lshlrev_b32 v100, 4, v3")
        a("v_mov_b32 v101, 0x20000000")
        a("v_cmp_eq_u32 vcc, 0, v4")
        a("v_cndmask_b32 v100, v101, v100, vcc")
        a(f"buffer_store_dwordx4 v[118:121], v100, {srd(rWS)}, s14 offen sc1")
        a.label(lc)
        a.flush_hazards(2)

    def rp_issue_dyn(self, su, lds_base_sgpr, k_sgpr):
        a = self.a
        n0 = len(a.lines)
        self.rp_issue(su, lds_base_sgpr, 1000)
        for i in range(n0, len(a.lines)):
            ln = a.lines[i]
            if "v_writelane_b32 v122" in ln:
                e = int(ln.split(",")[-1]) - 1000
                src = ln.split(",")[1].strip()
                a.lines[i] = f"  s_lshl_b32 s86, s{k_sgpr}, 2\n  s_add_u32 m0, s86, {e}\n  s_nop 3\n  v_writelane_b32 v122, {src}, m0"
    def c_p1b(self):
        a = self.a
        a("s_waitcnt vmcnt(0)")
        self.bar("G1")
        self.stamp(11)
        sDT, sET, sTH, sC0, sA4 = 70, 71, 72, 73, 74
        a(f"s_bfe_u32 s{sDT}, s{sW}, 0x10001")
        a(f"s_and_b32 s{sET}, s{sW}, 1")
        a(f"s_lshr_b32 s{sTH}, s{sW}, 2")
        a(f"s_mul_i32 s{sC0}, s{sJ}, 5")
        a(f"s_lshr_b32 s{sC0}, s{sC0}, 2")
        a(f"s_and_b32 s{sA4}, s{sJ}, 3")
        a(f"s_lshl_b32 s{sA4}, s{sA4}, 2")
        a(f"s_lshl_b32 s{T0}, s{sX}, 3")
        a(f"s_lshl_b32 s{T1}, s{sTH}, 2")
        a(f"s_add_u32 s{T0}, s{T0}, s{T1}")
        a(f"s_mul_i32 s{T0}, s{T0}, 40")
        a(f"s_add_u32 s{T0}, s{T0}, s{sC0}")
        a(f"s_add_u32 s75, s{T0}, s{sDT}")
        a(f"s_add_u32 s76, s{T0}, s{sET}")
        a("s_lshl_b32 s75, s75, 10")
        a("s_lshl_b32 s76, s76, 10")
        a(f"s_add_u32 s75, s75, {PK}")
        a(f"s_add_u32 s76, s76, {VV}")
        for i in range(4): a(f"v_mov_b32 v{48+i}, 0x3f803f80")
        a(f"s_lshl_b32 s{T0}, s{sDT}, 4")
        a(f"s_sub_u32 s{T0}, s{T0}, s{sA4}")
        a(f"v_lshl_add_u32 v60, v3, 2, s{T0}")
        a(f"s_lshl_b32 s{T1}, s{sET}, 4")
        a(f"s_sub_u32 s{T1}, s{T1}, s{sA4}")
        a(f"v_add_u32 v61, s{T1}, v4")
        a("v_mul_u32_u24 v62, 20, v61")
        a("v_add_u32 v62, v62, v60")
        a("v_lshlrev_b32 v62, 2, v62")
        a("v_cmp_gt_u32 vcc, 20, v60")
        a("v_cmp_gt_u32 s[12:13], 20, v61")
        a("s_and_b64 s[12:13], s[12:13], vcc")
        a("v_mov_b32 v63, 0x20000000")
        a("v_cndmask_b32 v62, v63, v62, s[12:13]")
        a("v_add_u32 v64, 400, v60")
        a("v_lshlrev_b32 v64, 2, v64")
        a("v_cmp_eq_u32 s[12:13], 0, v4")
        a("s_and_b64 s[12:13], s[12:13], vcc")
        a(f"s_cmp_eq_u32 s{sET}, 0")
        a("s_cselect_b64 s[12:13], s[12:13], 0")
        a("v_cndmask_b32 v64, v63, v64, s[12:13]")
        a(f"s_lshl_b32 s77, s{sX}, 5")
        a(f"s_add_u32 s77, s77, s{sJ}")
        a("s_lshl_b32 s77, s77, 11")
        a(f"s_add_u32 s77, s77, {KVP}")
        a(f"s_and_b32 s{T0}, s{sW}, 3")
        a(f"s_lshl_b32 s{T0}, s{T0}, 11")
        a(f"s_add_u32 s{T0}, s{T0}, {4*1024}")
        a(f"v_add_u32 v65, s{T0}, v2")
        self.bar("W1")
        self.stamp(12)
        FK, FV = 16, 32
        for i in range(4):
            a(f"buffer_load_dwordx4 v[{FK+4*i}:{FK+4*i+3}], v2, {srd(rWS)}, s75 offen sc1")
            a(f"buffer_load_dwordx4 v[{FV+4*i}:{FV+4*i+3}], v2, {srd(rWS)}, s76 offen sc1")
            a(f"s_add_u32 s75, s75, {40*1024}")
            a(f"s_add_u32 s76, s76, {40*1024}")
        KV, Z = 52, 56
        for i in range(4):
            a(f"s_waitcnt vmcnt({2*(3-i)})")
            c = "0" if i == 0 else f"v[{KV}:{KV+3}]"
            a(f"v_mfma_f32_16x16x32_bf16 v[{KV}:{KV+3}], v[{FK+4*i}:{FK+4*i+3}], v[{FV+4*i}:{FV+4*i+3}], {c}")
            c = "0" if i == 0 else f"v[{Z}:{Z+3}]"
            a(f"v_mfma_f32_16x16x32_bf16 v[{Z}:{Z+3}], v[{FK+4*i}:{FK+4*i+3}], v[48:51], {c}")
        l1, l2 = self.lab("p1b"), self.lab("p1b")
        a(f"s_cmp_lt_u32 s{sW}, 4")
        a(f"s_cbranch_scc1 {l1}")
        a(f"ds_write_b128 v65, v[{KV}:{KV+3}]")
        a(f"ds_write_b128 v65, v[{Z}:{Z+3}] offset:1024")
        a("s_waitcnt lgkmcnt(0)")
        a.label(l1)
        self.bar("X1")
        a(f"s_cmp_ge_u32 s{sW}, 4")
        a(f"s_cbranch_scc1 {l2}")
        a("ds_read_b128 v[16:19], v65")
        a("ds_read_b128 v[20:23], v65 offset:1024")
        a("s_waitcnt lgkmcnt(0)")
        for p in range(2):
            a(f"v_pk_add_f32 v[{KV+2*p}:{KV+2*p+1}], v[{KV+2*p}:{KV+2*p+1}], v[{16+2*p}:{17+2*p}]")
            a(f"v_pk_add_f32 v[{Z+2*p}:{Z+2*p+1}], v[{Z+2*p}:{Z+2*p+1}], v[{20+2*p}:{21+2*p}]")
        a(f"buffer_store_dwordx4 v[{KV}:{KV+3}], v62, {srd(rWS)}, s77 offen sc1")
        a(f"buffer_store_dwordx4 v[{Z}:{Z+3}], v64, {srd(rWS)}, s77 offen sc1")
        a.label(l2)
        a("s_waitcnt vmcnt(0)")
        self.bar("G2")
        self.stamp(13)

    TB = 0; TROW = 136; XR = 150
    def c_pO(self):
        a = self.a
        TB, TROW, XR = self.TB, self.TROW, self.XR
        sKB0, sB4, sCROSS = 80, 81, 82
        a(f"s_mul_i32 s{T0}, s{sJ}, 5")
        a(f"s_lshr_b32 s{sKB0}, s{T0}, 3")
        a(f"s_and_b32 s{sB4}, s{T0}, 7")
        a(f"s_lshl_b32 s{sB4}, s{sB4}, 2")
        a(f"s_cmp_gt_u32 s{sB4}, 12")
        a(f"s_cselect_b32 s{sCROSS}, 1, 0")
        PQF = 64
        a(f"s_lshl_b32 s{T0}, s{sX}, 4")
        a(f"s_lshl_b32 s{T1}, s{sW}, 1")
        a(f"s_add_u32 s83, s{T0}, s{T1}")
        a(f"s_mul_i32 s{T0}, s83, 20")
        a(f"s_add_u32 s{T0}, s{T0}, s{sKB0}")
        a(f"s_lshl_b32 s{T0}, s{T0}, 10")
        a(f"s_add_u32 s{T0}, s{T0}, {PQ}")
        a(f"s_add_u32 s{T1}, s{T0}, {20*1024}")
        a(f"buffer_load_dwordx4 v[{PQF}:{PQF+3}], v2, {srd(rWS)}, s{T0} offen sc1")
        a(f"buffer_load_dwordx4 v[{PQF+8}:{PQF+11}], v2, {srd(rWS)}, s{T1} offen sc1")
        a(f"buffer_load_dwordx4 v[{PQF+4}:{PQF+7}], v2, {srd(rWS)}, s{T0} offen offset:1024 sc1")
        a(f"buffer_load_dwordx4 v[{PQF+12}:{PQF+15}], v2, {srd(rWS)}, s{T1} offen offset:1024 sc1")
        a(f"s_lshl_b32 s{T0}, s{sX}, 4")
        a(f"s_lshr_b32 s{T1}, s{sJ}, 3")
        a(f"s_lshl_b32 s{T1}, s{T1}, 2")
        a(f"s_add_u32 s{T0}, s{T0}, s{T1}")
        a(f"s_lshr_b32 s{T1}, s{sW}, 1")
        a(f"s_add_u32 s{T0}, s{T0}, s{T1}")
        a(f"s_mul_i32 s{T0}, s{T0}, {16*1280}")
        a(f"s_and_b32 s{T1}, s{sJ}, 7")
        a(f"s_mul_i32 s{T1}, s{T1}, 160")
        a(f"s_add_u32 s{T0}, s{T0}, s{T1}")
        a("v_mul_u32_u24 v12, 1280, v4")
        a("v_lshl_add_u32 v12, v3, 3, v12")
        for n in range(5):
            a(f"buffer_load_dwordx2 v[{XR+2*n}:{XR+2*n+1}], v12, {srd(rX)}, s{T0} offen offset:{n*32}")
        a(f"v_mul_u32_u24 v61, {TROW}, v4")
        a("v_lshl_add_u32 v61, v3, 3, v61")
        if TB: a(f"v_add_u32 v61, {TB}, v61")
        a(f"s_and_b32 s{T0}, s{sJ}, 3")
        a("v_lshrrev_b32 v20, 2, v4")
        a(f"v_cmp_eq_u32 vcc, s{T0}, v20")
        a("v_and_b32 v20, 3, v4")
        a("v_add_u32 v20, 16, v20")
        a("v_mov_b32 v21, 21")
        a("v_cndmask_b32 v20, v21, v20, vcc")
        a(f"v_mul_u32_u24 v20, {TROW}, v20")
        a("v_lshl_add_u32 v62, v3, 3, v20")
        if TB: a(f"v_add_u32 v62, {TB}, v62")
        a("v_lshlrev_b32 v63, 3, v3")
        a(f"v_add_u32 v63, {TB + 20*TROW}, v63")
        a(f"s_and_b32 s{T0}, s{sJ}, 1")
        a(f"s_lshl_b32 s{T0}, s{T0}, 3")
        a(f"v_add_u32 v10, s{T0}, v2")
        a(f"s_bfe_u32 s{T0}, s{sJ}, 0x10002")
        a(f"s_lshl_b32 s{T0}, s{T0}, 3")
        a(f"v_add_u32 v11, s{T0}, v2")
        a(f"s_and_b32 s{T0}, s{sJ}, 3")
        a(f"v_cmp_eq_u32 vcc, s{T0}, v3")
        a("v_mov_b32 v12, 0x20000000")
        a("v_cndmask_b32 v11, v12, v11, vcc")
        self.stamp(14)
        self.bar("W2")
        self.stamp(15)
        self.bar("T1")
        for ti, va in enumerate((61, 62, 63)):
            for kp in range(2):
                F = 16 + (ti*2 + kp)*4
                a(f"ds_read_b64 v[{F}:{F+1}], v{va} offset:{kp*64}")
                a(f"ds_read_b64 v[{F+2}:{F+3}], v{va} offset:{kp*64 + 32}")
        a("s_waitcnt vmcnt(5) lgkmcnt(0)")
        ACC = 40
        for i in range(2):
            for ti in range(3):
                d = ACC + (i*3 + ti)*4
                a(f"v_mfma_f32_16x16x32_bf16 v[{d}:{d+3}], v[{16+ti*8}:{19+ti*8}], v[{PQF+8*i}:{PQF+8*i+3}], 0")
        lab = self.lab("cr")
        a(f"s_cmp_eq_u32 s{sCROSS}, 0")
        a(f"s_cbranch_scc1 {lab}")
        for i in range(2):
            for ti in range(3):
                d = ACC + (i*3 + ti)*4
                a(f"v_mfma_f32_16x16x32_bf16 v[{d}:{d+3}], v[{20+ti*8}:{23+ti*8}], v[{PQF+8*i+4}:{PQF+8*i+7}], v[{d}:{d+3}]")
        a.label(lab)
        a.flush_hazards(8)
        for i in range(2):
            M, Lf, D = ACC + i*12, ACC + i*12 + 4, ACC + i*12 + 8
            a(f"v_add_f32 v{D}, {f32(1e-6)}, v{D}")
            a(f"v_rcp_f32 v{D}, v{D}")
            for base in (M, Lf):
                a(f"v_pk_mul_f32 v[{base}:{base+1}], v[{base}:{base+1}], v[{D}:{D+1}] op_sel_hi:[1,0]")
                a(f"v_pk_mul_f32 v[{base+2}:{base+3}], v[{base+2}:{base+3}], v[{D}:{D+1}] op_sel_hi:[1,0]")
                a(f"v_cvt_pk_bf16_f32 v{base}, v{base}, v{base+1}")
                a(f"v_cvt_pk_bf16_f32 v{base+1}, v{base+2}, v{base+3}")
            a(f"s_add_u32 s{T0}, s83, {i}")
            a(f"s_mul_i32 s{T0}, s{T0}, 20")
            a(f"s_lshr_b32 s{T1}, s{sJ}, 1")
            a(f"s_add_u32 s{T1}, s{T1}, s{T0}")
            a(f"s_lshl_b32 s{T1}, s{T1}, 10")
            a(f"s_add_u32 s{T1}, s{T1}, {OB}")
            self.hstore(f"buffer_store_dwordx2 v[{M}:{M+1}], v10, {srd(rWS)}, s{T1} offen")
            a(f"s_lshr_b32 s{T1}, s{sJ}, 3")
            a(f"s_add_u32 s{T1}, s{T1}, s{T0}")
            a(f"s_add_u32 s{T1}, s{T1}, 16")
            a(f"s_lshl_b32 s{T1}, s{T1}, 10")
            a(f"s_add_u32 s{T1}, s{T1}, {OB}")
            self.hstore(f"buffer_store_dwordx2 v[{Lf}:{Lf+1}], v11, {srd(rWS)}, s{T1} offen")
        a("s_waitcnt vmcnt(0)")
        self.bar("G3")
        self.stamp(16)

    def c_p2(self):
        a = self.a
        XR = self.XR
        sRG, sC8, sTT, sKH = 70, 71, 72, 73
        a(f"s_lshr_b32 s{sRG}, s{sJ}, 3")
        a(f"s_and_b32 s{sC8}, s{sJ}, 7")
        a(f"s_lshr_b32 s{sTT}, s{sW}, 1")
        a(f"s_and_b32 s{sKH}, s{sW}, 1")
        a(f"s_lshl_b32 s77, s{sX}, 4")
        a(f"s_lshl_b32 s{T0}, s{sRG}, 2")
        a(f"s_add_u32 s77, s77, s{T0}")
        a(f"s_add_u32 s77, s77, s{sTT}")
        a(f"s_mul_i32 s{T0}, s77, 20")
        a(f"s_mul_i32 s{T1}, s{sKH}, 10")
        a(f"s_add_u32 s{T0}, s{T0}, s{T1}")
        a(f"s_lshl_b32 s{T0}, s{T0}, 10")
        a(f"s_add_u32 s80, s{T0}, {OB}")
        a(f"s_mul_i32 s{T0}, s{sKH}, {5*1024}")
        a(f"s_add_u32 s{T0}, s{T0}, {12*1024}")
        a(f"v_add_u32 v13, s{T0}, v2")
        a(f"v_add_u32 v14, {50*1024}, v13")
        a(f"s_mul_i32 s{T0}, s{sW}, {5*1024}")
        a(f"s_add_u32 s{T0}, s{T0}, {72*1024}")
        a(f"v_add_u32 v10, s{T0}, v2")
        a(f"s_xor_b32 s{T1}, s{sW}, 1")
        a(f"s_mul_i32 s{T1}, s{T1}, {5*1024}")
        a(f"s_add_u32 s{T1}, s{T1}, {72*1024}")
        a(f"v_add_u32 v11, s{T1}, v2")
        self.bar("W3")
        self.stamp(18)
        OF = 16; D = 6
        def oload(i):
            out = []
            if i and (i & 3) == 0: out.append("s_add_u32 s80, s80, 4096")
            out.append(f"buffer_load_dwordx4 v[{OF+4*i}:{OF+4*i+3}], v2, {srd(rWS)}, s80 offen offset:{(i & 3)*1024} sc1")
            return out
        for i in range(D):
            for x in oload(i): a(x)
        ACC = 96; WF = 56
        def wreads(i):
            out = []
            for n in range(5):
                F = WF + (i & 1)*20 + n*4
                off = i*10*1024 + n*1024
                if i < 5: out.append(f"ds_read_b128 v[{F}:{F+3}], v13 offset:{off}")
                else: out.append(f"ds_read_b128 v[{F}:{F+3}], v14 offset:{off - 50*1024}")
            return out
        for x in wreads(0): a(x)
        for i in range(10):
            issued = min(10, i + D)
            a(f"s_waitcnt vmcnt({issued - i - 1}) lgkmcnt(0)")
            rd = wreads(i + 1) if i < 9 else []
            if i + D < 10: rd = rd + oload(i + D)
            k = 0
            for n in range(5):
                d = ACC + n*4
                W = WF + (i & 1)*20 + n*4; O = OF + 4*i
                c = "0" if i == 0 else f"v[{d}:{d+3}]"
                a(f"v_mfma_f32_16x16x32_bf16 v[{d}:{d+3}], v[{W}:{W+3}], v[{O}:{O+3}], {c}")
                if k < len(rd): a(rd[k]); k += 1
            while k < len(rd): a(rd[k]); k += 1
        self.stamp(20)
        self.bar("M2")
        lk1, lj = self.lab("k1"), self.lab("kj")
        a(f"s_cmp_eq_u32 s{sKH}, 1")
        a(f"s_cbranch_scc1 {lk1}")
        for n in (3, 4): a(f"ds_write_b128 v10, v[{ACC+4*n}:{ACC+4*n+3}] offset:{n*1024}")
        a(f"s_branch {lj}")
        a.label(lk1)
        for n in (0, 1, 2): a(f"ds_write_b128 v10, v[{ACC+4*n}:{ACC+4*n+3}] offset:{n*1024}")
        a.label(lj)
        a("s_waitcnt lgkmcnt(0)")
        self.bar("X2")
        S, Q = 16, 18
        TM = 120
        lend = self.lab("p2e")
        for kh, tiles in ((0, (0, 1, 2)), (1, (3, 4))):
            if kh == 0:
                lk = self.lab("e1")
                a(f"s_cmp_eq_u32 s{sKH}, 1")
                a(f"s_cbranch_scc1 {lk}")
            else:
                a.label(lk)
                a.flush_hazards(2)
            for n in tiles: a(f"ds_read_b128 v[{TM+4*n}:{TM+4*n+3}], v11 offset:{n*1024}")
            a(f"v_mov_b32 v{S}, 0\nv_mov_b32 v{S+1}, 0\nv_mov_b32 v{Q}, 0\nv_mov_b32 v{Q+1}, 0")
            a("s_waitcnt lgkmcnt(0)")
            for n in tiles:
                d = ACC + n*4
                for p in range(2):
                    x = XR + 2*n + p
                    a(f"v_lshlrev_b32 v20, 16, v{x}")
                    a(f"v_and_b32 v21, 0xffff0000, v{x}")
                    a(f"v_pk_add_f32 v[{d+2*p}:{d+2*p+1}], v[{d+2*p}:{d+2*p+1}], v[{TM+4*n+2*p}:{TM+4*n+2*p+1}]")
                    a(f"v_pk_add_f32 v[{d+2*p}:{d+2*p+1}], v[{d+2*p}:{d+2*p+1}], v[20:21]")
                    a(f"v_pk_add_f32 v[{S}:{S+1}], v[{S}:{S+1}], v[{d+2*p}:{d+2*p+1}]")
                    a(f"v_pk_fma_f32 v[{Q}:{Q+1}], v[{d+2*p}:{d+2*p+1}], v[{d+2*p}:{d+2*p+1}], v[{Q}:{Q+1}]")
                a(f"v_cvt_pk_bf16_f32 v{d}, v{d}, v{d+1}")
                a(f"v_cvt_pk_bf16_f32 v{d+1}, v{d+2}, v{d+3}")
                a(f"s_mul_i32 s{T0}, s{sC8}, 5")
                a(f"s_add_u32 s{T0}, s{T0}, {n}")
                a(f"s_and_b32 s{T1}, s{T0}, 1")
                a(f"s_lshl_b32 s{T1}, s{T1}, 3")
                a(f"s_lshr_b32 s{T0}, s{T0}, 1")
                a(f"s_mul_i32 s{T2}, s77, 20")
                a(f"s_add_u32 s{T0}, s{T0}, s{T2}")
                a(f"s_lshl_b32 s{T0}, s{T0}, 10")
                a(f"s_add_u32 s{T0}, s{T0}, s{T1}")
                a(f"s_add_u32 s{T0}, s{T0}, {HB}")
                self.hstore(f"buffer_store_dwordx2 v[{d}:{d+1}], v2, {srd(rWS)}, s{T0} offen")
            if kh == 0: a(f"s_branch {lend}")
        a.label(lend)
        a.flush_hazards(2)
        a(f"v_add_f32 v{S}, v{S}, v{S+1}")
        a(f"v_add_f32 v{Q}, v{Q}, v{Q+1}")
        for sw in ("v_permlane32_swap_b32", "v_permlane16_swap_b32"):
            a(f"v_mov_b32 v20, v{S}")
            a(f"v_mov_b32 v21, v{Q}")
            a(f"{sw} v{S}, v20")
            a(f"{sw} v{Q}, v21")
            a(f"v_add_f32 v{S}, v{S}, v20")
            a(f"v_add_f32 v{Q}, v{Q}, v21")
        a(f"v_mov_b32 v{S+1}, v{Q}")
        a("v_lshlrev_b32 v20, 4, v4")
        a("v_mov_b32 v21, 0x20000000")
        a("v_cmp_eq_u32 vcc, 0, v3")
        a("v_cndmask_b32 v20, v21, v20, vcc")
        a(f"s_lshl_b32 s{T0}, s77, 11")
        a(f"s_lshl_b32 s{T1}, s{sC8}, 8")
        a(f"s_add_u32 s{T0}, s{T0}, s{T1}")
        a(f"s_lshl_b32 s{T1}, s{sKH}, 3")
        a(f"s_add_u32 s{T0}, s{T0}, s{T1}")
        a(f"s_add_u32 s{T0}, s{T0}, {ST2}")
        self.hstore(f"buffer_store_dwordx2 v[{S}:{S+1}], v20, {srd(rWS)}, s{T0} offen")
        a("s_waitcnt vmcnt(0)")
        self.bar("G4")
        self.stamp(21)

    LC3 = 72*1024
    def c_p3(self):
        a = self.a
        sMQ, sKH = 70, 71
        LC = self.LC3; EX = 112*1024
        a(f"s_lshr_b32 s{sMQ}, s{sW}, 1")
        a(f"s_and_b32 s{sKH}, s{sW}, 1")
        a(f"s_lshl_b32 s76, s{sX}, 4")
        a(f"s_lshl_b32 s{T0}, s{sRB}, 3")
        a(f"s_add_u32 s76, s76, s{T0}")
        a(f"s_lshl_b32 s{T0}, s{sMQ}, 1")
        a(f"s_add_u32 s76, s76, s{T0}")
        a(f"s_add_u32 s77, s76, s{sKH}")
        a(f"s_xor_b32 s{T0}, s{sKH}, 1")
        a(f"s_add_u32 s78, s76, s{T0}")
        for sreg, dst in ((77, 80), (78, 81)):
            a(f"s_mul_i32 s{T0}, s{sreg}, 20")
            a(f"s_mul_i32 s{T1}, s{sKH}, 10")
            a(f"s_add_u32 s{T0}, s{T0}, s{T1}")
            a(f"s_lshl_b32 s{T0}, s{T0}, 10")
            a(f"s_add_u32 s{dst}, s{T0}, {HB}")
        a(f"s_mul_i32 s{T0}, s{sKH}, {6*1024}")
        a(f"v_add_u32 v12, s{T0}, v2")
        a(f"v_add_u32 v13, {64*1024}, v12")
        a(f"v_add_u32 v14, {128*1024}, v12")
        a(f"s_mul_i32 s{T0}, s{sW}, {6*1024}")
        a(f"s_add_u32 s{T0}, s{T0}, {EX}")
        a(f"v_add_u32 v10, s{T0}, v2")
        a(f"s_xor_b32 s{T1}, s{sW}, 1")
        a(f"s_mul_i32 s{T1}, s{T1}, {6*1024}")
        a(f"s_add_u32 s{T1}, s{T1}, {EX}")
        a(f"v_add_u32 v11, s{T1}, v2")
        self.bar("W4")
        self.stamp(23)
        HF = 16; D = 4; RING = 5
        WF = 56; ACC = 104; ST = 152
        q = []
        def hload(ks):
            out = []
            for i in range(2):
                F = HF + ((ks % RING)*2 + i)*4
                if ks and (ks & 3) == 0: out.append(f"s_add_u32 s{80+i}, s{80+i}, 4096")
                out.append(f"buffer_load_dwordx4 v[{F}:{F+3}], v2, {srd(rWS)}, s{80+i} offen offset:{(ks & 3)*1024} sc1")
            q.extend([("h", ks)]*2)
            return out
        for ks in range(D):
            for x in hload(ks): a(x)
        def wr2(ks):
            out = []
            for n in range(6):
                F = WF + (ks & 1)*24 + n*4
                b0 = ks*12 + n
                kb = 112 + b0 if ks < 4 else b0 - 48
                off = kb*1024
                out.append(f"ds_read_b128 v[{F}:{F+3}], {('v12', 'v13', 'v14')[off >> 16]} offset:{off & 0xffff}")
            return out
        def need(tag):
            idx = max(i for i, t in enumerate(q) if t == tag)
            return len(q) - 1 - idx
        for x in wr2(0): a(x)
        for ks in range(10):
            a(f"s_waitcnt vmcnt({need(('h', ks))}) lgkmcnt(0)")
            if ks == 4: self.bar("C4")
            rd = wr2(ks + 1) if ks < 9 else []
            k = 0
            mf = []
            for i in range(2):
                for n in range(6):
                    d = ACC + (i*6 + n)*4
                    W = WF + (ks & 1)*24 + n*4; H = HF + ((ks % RING)*2 + i)*4
                    c = "0" if ks == 0 else f"v[{d}:{d+3}]"
                    mf.append(f"v_mfma_f32_16x16x32_bf16 v[{d}:{d+3}], v[{W}:{W+3}], v[{H}:{H+3}], {c}")
            for j, m in enumerate(mf):
                a(m)
                if k < len(rd): a(rd[k]); k += 1
                if j == 7 and ks + D < 10:
                    for x in hload(ks + D): a(x)
            if ks == 5:
                a(f"s_lshl_b32 s{T0}, s77, 11")
                a(f"s_add_u32 s{T0}, s{T0}, {ST2}")
                for p in range(2):
                    a(f"buffer_load_dwordx4 v[{ST+4*p}:{ST+4*p+3}], v2, {srd(rWS)}, s{T0} offen offset:{1024*p} sc1")
                q.extend(["st"]*2)
        self.stamp(25)
        for n in range(6):
            d = ACC + (6 + n)*4
            a(f"ds_write_b128 v10, v[{d}:{d+3}] offset:{n*1024}")
        a("s_waitcnt vmcnt(0)")
        for p in range(1, 4):
            a(f"v_pk_add_f32 v[{ST}:{ST+1}], v[{ST}:{ST+1}], v[{ST+2*p}:{ST+2*p+1}]")
        for sw in ("v_permlane32_swap_b32", "v_permlane16_swap_b32"):
            a(f"v_mov_b32 v{ST+4}, v{ST}")
            a(f"v_mov_b32 v{ST+5}, v{ST+1}")
            a(f"{sw} v{ST}, v{ST+4}")
            a(f"{sw} v{ST+1}, v{ST+5}")
            a(f"v_pk_add_f32 v[{ST}:{ST+1}], v[{ST}:{ST+1}], v[{ST+4}:{ST+5}]")
        a(f"v_mul_f32 v{ST}, {f32(1/640)}, v{ST}")
        a(f"v_mul_f32 v{ST+1}, {f32(1/640)}, v{ST+1}")
        a(f"v_fma_f32 v{ST+1}, -v{ST}, v{ST}, v{ST+1}")
        a(f"v_max_f32 v{ST+1}, 0, v{ST+1}")
        a(f"v_add_f32 v{ST+2}, {f32(1e-5)}, v{ST+1}")
        a(f"v_rsq_f32 v{ST+2}, v{ST+2}")
        a(f"v_mul_f32 v{ST+3}, v{ST+2}, v{ST+2}")
        a(f"v_fmaak_f32 v{ST+3}, v{ST+1}, v{ST+3}, {f32(1e-5)}")
        a(f"v_rsq_f32 v{ST+3}, v{ST+3}")
        a(f"v_mul_f32 v{ST+2}, v{ST+2}, v{ST+3}")
        a("s_waitcnt lgkmcnt(0)")
        self.bar("X3")
        self.stamp(33)
        CSR, B1R = 16, 40
        for n in range(6):
            d = ACC + (6 + n)*4
            a(f"ds_read_b128 v[{d}:{d+3}], v11 offset:{n*1024}")
        a(f"v_lshlrev_b32 v12, 4, v3")
        a(f"v_add_u32 v12, {LC}, v12")
        for n in range(6):
            a(f"ds_read_b128 v[{CSR+4*n}:{CSR+4*n+3}], v12 offset:{n*64}")
            a(f"ds_read_b128 v[{B1R+4*n}:{B1R+4*n+3}], v12 offset:{512 + n*64}")
        C1 = -2*0.7978845608028654*1.4426950408889634
        C2 = C1*0.044715
        a(f"s_mov_b32 s80, {f32(C1)}\ns_mov_b32 s81, {f32(C1)}\ns_mov_b32 s82, {f32(C2)}\ns_mov_b32 s83, {f32(C2)}")
        a("v_mov_b32 v70, s80\nv_mov_b32 v71, s81")
        a("s_waitcnt lgkmcnt(0)")
        self.bar("R3")
        self.stamp(35)
        mean = f"v[{ST}:{ST+1}]"; scale = f"v[{ST+2}:{ST+3}]"
        for m in range(3):
            PKD = 72 + 4*m
            for t2 in range(2):
                n = 2*m + t2
                d = ACC + n*4; o = ACC + (6 + n)*4
                for p in range(2):
                    x = f"v[{d+2*p}:{d+2*p+1}]"; T = f"v[{64+2*p}:{65+2*p}]"
                    a(f"v_pk_add_f32 {x}, {x}, v[{o+2*p}:{o+2*p+1}]")
                    a(f"v_pk_fma_f32 {x}, v[{CSR+4*n+2*p}:{CSR+4*n+2*p+1}], {mean}, {x} op_sel_hi:[1,0,1] neg_lo:[1,0,0] neg_hi:[1,0,0]")
                    a(f"v_pk_fma_f32 {x}, {x}, {scale}, v[{B1R+4*n+2*p}:{B1R+4*n+2*p+1}] op_sel_hi:[1,0,1]")
                    a(f"v_pk_mul_f32 {T}, {x}, {x}")
                    a(f"v_pk_fma_f32 {T}, {T}, s[82:83], v[70:71]")
                    a(f"v_pk_mul_f32 {T}, {T}, {x}")
                for r in range(4): a(f"v_exp_f32 v{64+r}, v{64+r}")
                for p in range(2): a(f"v_pk_add_f32 v[{64+2*p}:{65+2*p}], v[{64+2*p}:{65+2*p}], 1.0 op_sel_hi:[1,0]")
                for r in range(4): a(f"v_rcp_f32 v{64+r}, v{64+r}")
                for p in range(2): a(f"v_pk_mul_f32 v[{d+2*p}:{d+2*p+1}], v[{d+2*p}:{d+2*p+1}], v[{64+2*p}:{65+2*p}]")
                a(f"v_cvt_pk_bf16_f32 v{PKD+2*t2}, v{d}, v{d+1}")
                a(f"v_cvt_pk_bf16_f32 v{PKD+2*t2+1}, v{d+2}, v{d+3}")
            a(f"s_mul_i32 s{T0}, s77, 48")
            a(f"s_mul_i32 s{T1}, s{sCT}, 3")
            a(f"s_add_u32 s{T0}, s{T0}, s{T1}")
            a(f"s_add_u32 s{T0}, s{T0}, {m}")
            a(f"s_lshl_b32 s{T0}, s{T0}, 10")
            a(f"s_add_u32 s{T0}, s{T0}, {HH}")
            self.hstore(f"buffer_store_dwordx4 v[{PKD}:{PKD+3}], v2, {srd(rWS)}, s{T0} offen")
        self.stamp(36)
        a("s_waitcnt vmcnt(0)")
        self.bar("G5")
        self.stamp(26)

    SL4 = [80, 0, 20, 40, 60, 100, 120, 140, 80, 0, 20, 40]
    def c_p4(self):
        a = self.a
        sRG, sC8, sKQ, sMH = 70, 71, 72, 73
        SL = self.SL4
        a(f"s_lshr_b32 s{sRG}, s{sJ}, 3")
        a(f"s_and_b32 s{sC8}, s{sJ}, 7")
        a(f"s_lshr_b32 s{sKQ}, s{sW}, 1")
        a(f"s_and_b32 s{sMH}, s{sW}, 1")
        a(f"s_lshl_b32 s76, s{sX}, 4")
        a(f"s_lshl_b32 s{T0}, s{sRG}, 2")
        a(f"s_add_u32 s76, s76, s{T0}")
        a(f"s_lshl_b32 s{T0}, s{sMH}, 1")
        a(f"s_add_u32 s76, s76, s{T0}")
        a(f"s_and_b32 s{T0}, s{sKQ}, 1")
        a(f"s_add_u32 s77, s76, s{T0}")
        a(f"s_xor_b32 s{T0}, s{T0}, 1")
        a(f"s_add_u32 s78, s76, s{T0}")
        XR = 140; B2 = 150
        self.mk_srd(rB, pB2, 640*2)
        lx = self.lab("x")
        a(f"s_cmp_ge_u32 s{sKQ}, 2")
        a(f"s_cbranch_scc1 {lx}")
        for n in range(5):
            a(f"s_mul_i32 s{T0}, s{sC8}, 5")
            a(f"s_add_u32 s{T0}, s{T0}, {n}")
            a(f"s_and_b32 s{T1}, s{T0}, 1")
            a(f"s_lshl_b32 s{T1}, s{T1}, 3")
            a(f"s_lshr_b32 s{T0}, s{T0}, 1")
            a(f"s_mul_i32 s{T2}, s77, 20")
            a(f"s_add_u32 s{T0}, s{T0}, s{T2}")
            a(f"s_lshl_b32 s{T0}, s{T0}, 10")
            a(f"s_add_u32 s{T0}, s{T0}, s{T1}")
            a(f"s_add_u32 s{T0}, s{T0}, {HB}")
            a(f"buffer_load_dwordx2 v[{XR+2*n}:{XR+2*n+1}], v2, {srd(rWS)}, s{T0} offen sc1")
        a("v_lshlrev_b32 v12, 3, v3")
        a(f"s_mul_i32 s{T0}, s{sC8}, 160")
        for n in range(5):
            a(f"buffer_load_dwordx2 v[{B2+2*n}:{B2+2*n+1}], v12, {srd(rB)}, s{T0} offen offset:{n*32}")
        a.label(lx)
        for sreg, dst in ((77, 80), (78, 81)):
            a(f"s_mul_i32 s{T0}, s{sreg}, 48")
            a(f"s_mul_i32 s{T1}, s{sKQ}, 12")
            a(f"s_add_u32 s{T0}, s{T0}, s{T1}")
            a(f"s_lshl_b32 s{T0}, s{T0}, 10")
            a(f"s_add_u32 s{dst}, s{T0}, {HH}")
        a(f"s_mul_i32 s{T0}, s{sKQ}, {5*1024}")
        a(f"v_add_u32 v13, s{T0}, v2")
        a(f"v_add_u32 v14, {64*1024}, v13")
        a(f"v_add_u32 v12, {128*1024}, v13")
        self.stamp(27)
        self.bar("W5")
        self.stamp(28)
        HF = 16; D = 4; RING = 5; WF = 56; ACC = 96
        q = []
        def hload(ks):
            out = []
            for i in range(2):
                F = HF + ((ks % RING)*2 + i)*4
                if ks and (ks & 3) == 0: out.append(f"s_add_u32 s{80+i}, s{80+i}, 4096")
                out.append(f"buffer_load_dwordx4 v[{F}:{F+3}], v2, {srd(rWS)}, s{80+i} offen offset:{(ks & 3)*1024} sc1")
            q.extend([ks]*2)
            return out
        for ks in range(D):
            for x in hload(ks): a(x)
        def wreads(ks):
            out = []
            for n in range(5):
                off = SL[ks]*1024 + n*1024
                b, lo = off >> 16, off & 0xffff
                out.append(f"ds_read_b128 v[{WF+(ks&1)*20+n*4}:{WF+(ks&1)*20+n*4+3}], v{(13, 14, 12)[b]} offset:{lo}")
            return out
        for x in wreads(0): a(x)
        for ks in range(12):
            idx = max(i for i, t in enumerate(q) if t == ks)
            a(f"s_waitcnt vmcnt({len(q) - 1 - idx}) lgkmcnt(0)")
            if ks == 3: self.bar("C3")
            if ks == 7: self.bar("C7")
            rd = wreads(ks + 1) if ks < 11 else []
            k = 0; j = 0
            for i in range(2):
                for n in range(5):
                    d = ACC + (i*5 + n)*4
                    W = WF + (ks & 1)*20 + n*4; H = HF + ((ks % RING)*2 + i)*4
                    c = "0" if ks == 0 else f"v[{d}:{d+3}]"
                    a(f"v_mfma_f32_16x16x32_bf16 v[{d}:{d+3}], v[{W}:{W+3}], v[{H}:{H+3}], {c}")
                    if k < len(rd): a(rd[k]); k += 1
                    if j == 6 and ks + D < 12:
                        for x in hload(ks + D): a(x)
                    j += 1
        self.stamp(30)
        self.bar("M4")
        a(f"s_mul_i32 s{T0}, s{sMH}, {30*1024}")
        a(f"s_lshr_b32 s{T1}, s{sKQ}, 1")
        a(f"s_add_u32 s{T1}, s{T1}, s{sKQ}")
        a(f"s_mul_i32 s{T1}, s{T1}, {5*1024}")
        a(f"s_add_u32 s{T1}, s{T1}, s{T0}")
        a(f"v_add_u32 v10, s{T1}, v2")
        for n in range(5):
            d = ACC + (5 + n)*4
            a(f"ds_write_b128 v10, v[{d}:{d+3}] offset:{n*1024}")
        lab = self.lab("kr")
        a(f"s_cmp_lt_u32 s{sKQ}, 2")
        a(f"s_cbranch_scc1 {lab}")
        a(f"s_and_b32 s{T1}, s{sKQ}, 1")
        a(f"s_mul_i32 s{T1}, s{T1}, {15*1024}")
        a(f"s_add_u32 s{T1}, s{T1}, {10*1024}")
        a(f"s_add_u32 s{T1}, s{T1}, s{T0}")
        a(f"v_add_u32 v10, s{T1}, v2")
        for n in range(5):
            d = ACC + n*4
            a(f"ds_write_b128 v10, v[{d}:{d+3}] offset:{n*1024}")
        a.label(lab)
        a("s_waitcnt lgkmcnt(0)")
        self.bar("X4")
        lend = self.lab("krend")
        a(f"s_cmp_ge_u32 s{sKQ}, 2")
        a(f"s_cbranch_scc1 {lend}")
        a(f"s_mul_i32 s{T1}, s{sKQ}, {5*1024}")
        a(f"s_add_u32 s{T2}, s{T0}, s{T1}")
        a(f"s_sub_u32 s{T3}, s{T0}, s{T1}")
        a(f"s_add_u32 s{T3}, s{T3}, {5*1024}")
        a(f"v_add_u32 v10, s{T3}, v2")
        a(f"v_add_u32 v11, s{T2}, v2")
        TM = 16
        for n in range(5):
            a(f"ds_read_b128 v[{TM+n*4}:{TM+n*4+3}], v10 offset:{n*1024}")
        for n in range(5):
            a(f"ds_read_b128 v[{TM+20+n*4}:{TM+20+n*4+3}], v11 offset:{10*1024 + n*1024}")
        for n in range(5):
            a(f"ds_read_b128 v[{TM+40+n*4}:{TM+40+n*4+3}], v11 offset:{20*1024 + n*1024}")
        a("v_mul_u32_u24 v12, 1280, v4")
        a("v_lshl_add_u32 v12, v3, 3, v12")
        a(f"s_mul_i32 s{T0}, s77, {16*1280}")
        a(f"s_mul_i32 s{T1}, s{sC8}, 160")
        a(f"s_add_u32 s79, s{T0}, s{T1}")
        for k in range(3):
            a(f"s_waitcnt lgkmcnt({10 - 5*k})")
            for n in range(5):
                for p in range(2):
                    d = ACC + n*4 + 2*p; s = TM + 20*k + n*4 + 2*p
                    a(f"v_pk_add_f32 v[{d}:{d+1}], v[{d}:{d+1}], v[{s}:{s+1}]")
        for n in range(5):
            d = ACC + n*4
            for p in range(2):
                for src in (XR, B2):
                    x = src + 2*n + p
                    a(f"v_lshlrev_b32 v80, 16, v{x}")
                    a(f"v_and_b32 v81, 0xffff0000, v{x}")
                    a(f"v_pk_add_f32 v[{d+2*p}:{d+2*p+1}], v[{d+2*p}:{d+2*p+1}], v[80:81]")
            a(f"v_cvt_pk_bf16_f32 v{d}, v{d}, v{d+1}")
            a(f"v_cvt_pk_bf16_f32 v{d+1}, v{d+2}, v{d+3}")
            a(f"buffer_store_dwordx2 v[{d}:{d+1}], v12, {srd(rOUT)}, s79 offen offset:{n*32}")
        a.label(lend)
        self.stamp(31)
    def rp1_issue(self):
        a = self.a
        a(f"s_mul_i32 s96, s{sX}, 30")
        a(f"s_add_u32 s96, s96, s{sJ}")
        a(f"s_sub_u32 s96, s96, s{sRB}")
        a("s_add_u32 s96, s96, 50")
        self.mk_srd(64, pW1, 640*3072)
        self.mk_srd(88, pW2, 1536*1280)
        a("v_lshrrev_b32 v16, 3, v1")
        a("v_and_b32 v17, 7, v1")
        a("v_lshrrev_b32 v18, 1, v16")
        a("v_and_b32 v18, 3, v18")
        a("v_lshlrev_b32 v18, 1, v18")
        a("v_xor_b32 v17, v17, v18")
        a("v_lshlrev_b32 v17, 4, v17")
        l2, l3 = self.lab("r1"), self.lab("r1")
        a("s_cmp_lt_u32 s96, 170")
        a(f"s_cbranch_scc0 {l2}")
        for kind, r, rowb, ncg, base in ((1, 64, 3072, 24, 50), (2, 88, 1280, 10, 170)):
            if kind == 2:
                a.label(l2)
            a(f"s_mov_b32 s70, {kind}")
            a(f"s_sub_u32 s75, s96, {base}")
            self.sdivmod(74, 71, 75, ncg)
            a(f"v_mul_u32_u24 v18, {rowb}, v16")
            a("v_add_u32 v18, v18, v17")
            a(f"s_mul_i32 s12, s74, {128*rowb}")
            a("s_lshl_b32 s13, s71, 7")
            a("s_add_u32 s12, s12, s13")
            for n in range(16):
                a(f"s_mov_b32 m0, {128*1024 + n*1024}")
                a(f"buffer_load_dwordx4 v18, {srd(r)}, s12 offen lds")
                a(f"s_add_u32 s12, s12, {8*rowb}")
            if kind == 1: a(f"s_branch {l3}")
        a.label(l3)

    def rp1_process(self, parts=None):
        a = self.a
        if parts is None or parts == "setup": self.rp1_setup()
        if parts == "setup": return
        self.rp1_parts(range(4) if parts is None else parts)

    def rp1_setup(self):
        a = self.a
        a("v_lshrrev_b32 v24, 2, v4")
        a("v_and_b32 v25, 3, v4")
        a("v_lshl_add_u32 v26, v3, 2, v24")
        a("v_lshrrev_b32 v27, 1, v26")
        a("v_and_b32 v27, 3, v27")
        a("v_lshlrev_b32 v27, 1, v27")
        a("v_lshrrev_b32 v28, 1, v25")
        a("v_and_b32 v25, 1, v25")
        a("v_lshlrev_b32 v26, 7, v26")
        a("v_lshl_add_u32 v26, v25, 3, v26")
        a(f"v_add_u32 v26, {128*1024}, v26")
        for n4 in range(4):
            a(f"v_or_b32 v29, {2*n4}, v28")
            a("v_xor_b32 v29, v29, v27")
            a(f"v_lshl_add_u32 v{20+n4}, v29, 4, v26")
        for i in range(4): a(f"v_mov_b32 v{32+i}, 0x3f803f80")
        a("v_lshlrev_b32 v30, 4, v3")
        a("v_mov_b32 v31, 0x20000000")
        a("v_cmp_eq_u32 vcc, 0, v4")
        a("v_cndmask_b32 v30, v31, v30, vcc")

    def rp1_parts(self, n4s):
        a = self.a
        for n4 in n4s:
            F = 40 + 16*(n4 & 1)
            for sl in range(4):
                a(f"ds_read_b64_tr_b16 v[{F+4*sl}:{F+4*sl+1}], v{20+n4} offset:{sl*4096}")
                a(f"ds_read_b64_tr_b16 v[{F+4*sl+2}:{F+4*sl+3}], v{20+n4} offset:{sl*4096 + 2048}")
            a("s_lshl_b32 s12, s71, 2")
            a(f"s_add_u32 s12, s12, {n4}")
            d0, d2 = self.lab("d"), self.lab("d")
            a("s_cmp_eq_u32 s70, 1")
            a(f"s_cbranch_scc0 {d0}")
            self.sdivmod(3, 83, 12, 6)
            a("s_mul_i32 s3, s3, 120")
            a("s_add_u32 s3, s3, s83")
            for sl in range(4):
                a("s_lshl_b32 s13, s74, 2")
                if sl: a(f"s_add_u32 s13, s13, {sl}")
                self.sdivmod(92, 93, 13, 10)
                a("s_mul_i32 s93, s93, 12\ns_mul_i32 s92, s92, 6")
                a("s_add_u32 s92, s92, s93\ns_add_u32 s92, s92, s3")
                a("s_lshl_b32 s92, s92, 10")
                a(f"s_add_u32 s{76+sl}, s92, {W1F}")
            a(f"s_branch {d2}")
            a.label(d0)
            self.sdivmod(3, 83, 12, 5)
            a("s_mul_i32 s3, s3, 240")
            a("s_add_u32 s3, s3, s83")
            for sl in range(4):
                a("s_lshl_b32 s13, s74, 2")
                if sl: a(f"s_add_u32 s13, s13, {sl}")
                self.sdivmod(92, 93, 13, 12)
                a("s_mul_i32 s93, s93, 20\ns_mul_i32 s92, s92, 5")
                a("s_add_u32 s92, s92, s93\ns_add_u32 s92, s92, s3")
                a("s_lshl_b32 s92, s92, 10")
                a(f"s_add_u32 s{76+sl}, s92, {W2F}")
            a.label(d2)
            a("s_waitcnt lgkmcnt(0)")
            for sl in range(4):
                a(f"buffer_store_dwordx4 v[{F+4*sl}:{F+4*sl+3}], v2, {srd(rWS)}, s{76+sl} offen sc1")
            lc = self.lab("cs")
            a("s_cmp_eq_u32 s70, 1")
            a(f"s_cbranch_scc0 {lc}")
            for sl in range(4):
                c = "0" if sl == 0 else "v[36:39]"
                a(f"v_mfma_f32_16x16x32_bf16 v[36:39], v[{F+4*sl}:{F+4*sl+3}], v[32:35], {c}")
            a("s_mul_i32 s13, s74, 1536")
            a("s_lshl_b32 s14, s12, 4")
            a("s_add_u32 s13, s13, s14")
            a("s_lshl_b32 s13, s13, 2")
            a(f"s_add_u32 s13, s13, {CS1P}")
            a(f"buffer_store_dwordx4 v[36:39], v30, {srd(rWS)}, s13 offen sc1")
            a.label(lc)
            a.flush_hazards(3)

    def s_mode(self):
        a = self.a
        a(f"s_lshl_b32 s68, s{sX}, 7")
        if F_XCC: a(f"s_add_u32 s68, s68, {F_XCC}")
        a("v_min_u32 v161, 15, v1")
        a("v_lshlrev_b32 v161, 2, v161")
        a(f"s_mov_b32 s14, {F_RPO}")
        a(f"buffer_load_dword v162, v161, {srd(rWS)}, s14 offen sc1")
        self.poll(68, 32)
        a("v_and_b32 v164, 7, v164")
        a(f"v_cmp_ne_u32 vcc, s{sXCC}, v164")
        a("s_nop 1")
        a("s_cmp_eq_u64 vcc, 0")
        a(f"s_cselect_b32 s{sMODE}, 1, 0")
        a("v_and_b32 v165, -8, v162")
        a(f"v_cmp_ne_u32 vcc, s{sEP}, v165")
        a("s_nop 1")
        a("s_cmp_eq_u64 vcc, 0")
        a(f"s_cselect_b32 s{T1}, 2, 0")
        a(f"s_or_b32 s{T0}, s{sMODE}, s{T1}")
        a(f"v_mov_b32 v164, s{T0}")
        a(f"v_mov_b32 v163, {self.L_MODE}")
        a("ds_write_b32 v163, v164")
        a("s_waitcnt lgkmcnt(0)")

    def flag_off(self, dst, base, line_expr, slot_sgpr):
        a = self.a
        line_expr(dst)
        a(f"s_lshl_b32 s{dst}, s{dst}, 7")
        a(f"s_add_u32 s{dst}, s{dst}, {base}")
        a(f"s_lshl_b32 s{dst+1}, s{slot_sgpr}, 2")
        a(f"s_add_u32 s{dst+1}, s{dst+1}, s{dst}")

    def s_prog(self):
        a = self.a
        TB, TROW = self.TB, self.TROW
        self.bars = []
        lineX = lambda d: a(f"s_mov_b32 s{d}, s{sX}")
        lineJ = lambda d: a(f"s_mov_b32 s{d}, s{sJ}")
        def lineXR(d):
            a(f"s_lshl_b32 s{d}, s{sX}, 1")
            a(f"s_add_u32 s{d}, s{d}, s{sRB}")
        a("s_setprio 3")
        self.make_epoch()
        a(f"s_cmp_eq_u32 s{sCT}, 15")
        a("s_cbranch_scc1 L_s_spare")
        for st in range(self.NST):
            self.bar(f"B{st}")
            if st == 0:
                self.epoch_issue()
                self.rp1_issue()
            if st == 1:
                self.rp1_process("setup")
            if st == 2:
                a("s_waitcnt vmcnt(16)")
                self.epoch_take(blocking=True)
            if st == 4:
                a("s_waitcnt vmcnt(0)")
            if 4 <= st <= 7:
                self.rp1_process([st - 4])
            if st == 9:
                a("s_waitcnt vmcnt(0)")
                a("s_lshl_b32 s97, s96, 2")
                a(f"s_add_u32 s97, s97, {F_RPU}")
                self.flag_store(97, glob=True)
        self.bar("E1")
        self.s_mode()
        self.bar("E2")
        a("s_branch L_s_join")
        gemm = list(self.bars)
        a.label("L_s_spare")
        a.flush_hazards(2)
        self.bars = []
        self.epoch_issue()
        a("s_waitcnt vmcnt(0)")
        self.epoch_take(blocking=True)
        self.bar("SP1")
        self.bar("SP2")
        a(f"s_lshl_b32 s97, s{sX}, 1")
        a(f"s_add_u32 s97, s97, s{sRB}")
        a("s_lshl_b32 s97, s97, 2")
        a(f"s_add_u32 s97, s97, {F_RPO}")
        self.flag_store(97, glob=True)
        self.bar("E1")
        self.s_mode()
        self.bar("E2")
        self.s_spare_bars = list(self.bars)
        self.bars = gemm
        a.label("L_s_join")
        a.flush_hazards(2)
        self.flag_off(68, F_S1, lineX, sJ)
        self.bar("G1")
        self.flag_store(69)
        self.stamp(11)
        for i in range(4): a(f"v_mov_b32 v{16+i}, 0")
        for k in range(3): a(f"ds_write_b128 v2, v[16:19] offset:{TB + k*1024}")
        self.poll_s1_rp(68)
        a("s_waitcnt lgkmcnt(0)")
        self.bar("W1")
        self.stamp(12)
        self.bar("X1")
        self.flag_off(68, F_S2, lineJ, sX)
        self.bar("G2")
        self.flag_store(69, glob=True)
        self.stamp(13)
        a(f"s_mul_i32 s{T0}, s{sJ}, 5")
        a(f"s_and_b32 s81, s{T0}, 7")
        a("s_lshl_b32 s81, s81, 2")
        a("v_min_u32 v12, 40, v1")
        a("v_lshlrev_b32 v12, 4, v12")
        a("v_add_u32 v12, 1024, v12")
        for k, item0 in ((0, 0), (1, 64)):
            if item0: a("v_min_u32 v20, 40, v1\nv_add_u32 v20, 64, v20")
            else: a("v_mov_b32 v20, v1")
            a("v_mul_u32_u24 v21, 52429, v20")
            a("v_lshrrev_b32 v21, 18, v21")
            a("v_mul_u32_u24 v22, 5, v21")
            a("v_sub_u32 v22, v20, v22")
            a(f"v_mul_u32_u24 v21, {TROW}, v21")
            a("v_lshl_add_u32 v21, v22, 3, v21")
            a(f"s_lshl_b32 s{T0}, s81, 1")
            if TB: a(f"s_add_u32 s{T0}, s{T0}, {TB}")
            a(f"v_add_u32 v{24+k}, s{T0}, v21")
        self.poll(68, 8)
        self.stamp(15)
        a(f"s_lshl_b32 s{T0}, s{sJ}, 11")
        a(f"s_add_u32 s{T0}, s{T0}, {KVP}")
        for x in range(8):
            a(f"buffer_load_dwordx4 v[{32+4*x}:{35+4*x}], v2, {srd(rWS)}, s{T0} offen sc1")
            a(f"buffer_load_dwordx4 v[{64+4*x}:{67+4*x}], v12, {srd(rWS)}, s{T0} offen sc1")
            a(f"s_add_u32 s{T0}, s{T0}, {32*2048}")
        self.bar("W2")
        a("s_waitcnt vmcnt(0)")
        for base, areg in ((32, 24), (64, 25)):
            for x in range(1, 8):
                a(f"v_pk_add_f32 v[{base}:{base+1}], v[{base}:{base+1}], v[{base+4*x}:{base+4*x+1}]")
                a(f"v_pk_add_f32 v[{base+2}:{base+3}], v[{base+2}:{base+3}], v[{base+4*x+2}:{base+4*x+3}]")
            a(f"v_cvt_pk_bf16_f32 v{base}, v{base}, v{base+1}")
            a(f"v_cvt_pk_bf16_f32 v{base+1}, v{base+2}, v{base+3}")
            a(f"ds_write_b64 v{areg}, v[{base}:{base+1}]")
        a("s_waitcnt lgkmcnt(0)")
        self.bar("T1")
        self.flag_off(68, F_S3, lineX, sJ)
        self.bar("G3")
        self.flag_store(69)
        self.stamp(16)
        self.poll(68, 32)
        self.bar("W3")
        self.stamp(18)
        self.bar("M2")
        self.bar("X2")
        self.flag_off(68, F_S4, lineXR, sCT)
        self.bar("G4")
        self.flag_store(69)
        self.stamp(21)
        self.poll(68, 16)
        self.bar("W4")
        self.stamp(23)
        self.mk_srd(rB, pB1, 1536*2)
        a(f"s_mul_i32 s{T0}, s{sCT}, 96")
        for rnd in range(2):
            if rnd == 0: a("v_mov_b32 v12, v1")
            else: a("v_min_u32 v13, 31, v1\nv_add_u32 v13, 64, v13")
            c = 12 + rnd
            a(f"v_add_u32 v14, s{T0}, v{c}")
            a("v_lshlrev_b32 v15, 2, v14")
            a(f"s_mov_b32 s{T1}, {CS1P}")
            for p in range(5):
                a(f"buffer_load_dword v{16+8*rnd+p}, v15, {srd(rWS)}, s{T1} offen sc1")
                a(f"s_add_u32 s{T1}, s{T1}, {1536*4}")
            a("v_lshlrev_b32 v15, 1, v14")
            a(f"buffer_load_ushort v{21+8*rnd}, v15, {srd(rB)}, 0 offen")
        self.bar("C4")
        a("s_waitcnt vmcnt(0)")
        for rnd in range(2):
            b = 16 + 8*rnd
            for p in range(1, 5): a(f"v_add_f32 v{b}, v{b}, v{b+p}")
            a(f"v_lshlrev_b32 v{b+5}, 16, v{b+5}")
            a(f"v_lshlrev_b32 v{b+6}, 2, v{12+rnd}")
            a(f"v_add_u32 v{b+6}, {self.LC3}, v{b+6}")
            a(f"ds_write_b32 v{b+6}, v{b}")
            a(f"ds_write_b32 v{b+6}, v{b+5} offset:512")
        a("s_waitcnt lgkmcnt(0)")
        self.bar("X3")
        self.bar("R3")
        self.flag_off(68, F_S5, lineXR, sCT)
        self.bar("G5")
        self.flag_store(69)
        self.stamp(26)
        self.poll(68, 16)
        self.bar("W5")
        self.stamp(28)
        for b in ("C3", "C7", "M4", "X4"): self.bar(b)
        self.stamp(31)

    def l_bulk(self, src_sgpr, src_off, lds_base, nblk, throttle=None):
        a = self.a
        a(f"s_lshl_b32 s{T0}, s95, 10")
        a(f"s_add_u32 s{T1}, s{T0}, s{src_sgpr}")
        if src_off: a(f"s_add_u32 s{T1}, s{T1}, {src_off}")
        nit = (nblk + 2) // 3
        for k in range(nit):
            l2 = None
            if 3*k + 2 >= nblk:
                l2 = self.lab("bd")
                a(f"s_cmp_ge_u32 s95, {nblk - 3*k}")
                a(f"s_cbranch_scc1 {l2}")
            a(f"s_add_u32 m0, s{T0}, {lds_base + 3*k*1024}")
            a(f"buffer_load_dwordx4 v2, {srd(rWS)}, s{T1} offen sc1 lds")
            if k + 1 < nit: a(f"s_add_u32 s{T1}, s{T1}, {3*1024}")
            if l2: a.label(l2)
            if throttle and k % 2 == 1: a(f"s_waitcnt vmcnt({throttle})")

    def l_l2pf(self, base, nb):
        a = self.a
        a(f"s_mul_i32 s{T0}, s{sJ}, {nb*1024}")
        a(f"s_lshl_b32 s{T1}, s95, 10")
        a(f"s_add_u32 s{T0}, s{T0}, s{T1}")
        a(f"s_add_u32 s{T0}, s{T0}, {base}")
        for k in range(nb // 3):
            a(f"buffer_load_dwordx4 v[{16 + 4*(k & 3)}:{19 + 4*(k & 3)}], v2, {srd(rWS)}, s{T0} offen sc1")
            a(f"s_add_u32 s{T0}, s{T0}, 3072")

    def l_prog(self):
        a = self.a
        NST, NSLOT, SLOT = self.NST, self.NSLOT, self.SLOT
        self.bars = []
        a("s_setprio 3")
        a(f"s_sub_u32 s95, s{sW}, 9")
        a(f"s_cmp_eq_u32 s{sCT}, 15")
        a("s_cbranch_scc1 L_l_spare")
        sCB0, sCB1 = 68, 69
        a(f"s_lshl_b32 s{T0}, s{sCT}, 8")
        a(f"s_add_u32 s{T1}, s{T0}, 128")
        a(f"s_sub_u32 s{T2}, s{sCT}, 5")
        a(f"s_lshl_b32 s{T2}, s{T2}, 7")
        a(f"s_add_u32 s{T3}, s{T2}, 2560")
        a(f"s_add_u32 s{T2}, s{T2}, 1280")
        a(f"s_cmp_lt_u32 s{sCT}, 5")
        a(f"s_cselect_b32 s{sCB0}, s{T0}, s{T2}")
        a(f"s_cselect_b32 s{sCB1}, s{T1}, s{T3}")
        a("v_lshrrev_b32 v10, 3, v1")
        a("v_and_b32 v11, 7, v1")
        a("v_xor_b32 v11, v11, v10")
        a("v_mul_u32_u24 v10, 1280, v10")
        a("v_lshl_add_u32 v6, v11, 4, v10")
        for v, dst in ((0, 7), (1, 8)):
            a("v_lshlrev_b32 v10, 1, v3")
            if v: a("v_or_b32 v10, 8, v10")
            a("v_xor_b32 v10, v10, v4")
            a("v_and_b32 v11, 7, v10")
            a("v_lshlrev_b32 v11, 4, v11")
            a(f"v_mov_b32 v12, s{sCB0}")
            a(f"v_mov_b32 v13, s{sCB1}")
            a("v_cmp_gt_u32 vcc, 8, v10")
            a("v_cndmask_b32 v12, v13, v12, vcc")
            a("v_add_u32 v11, v11, v12")
            a("v_mul_u32_u24 v12, 3840, v3")
            a(f"v_add_u32 v{dst}, v11, v12")
        a(f"s_lshl_b32 s{T0}, s{sX}, 8")
        a(f"s_lshl_b32 s{T1}, s{sRB}, 7")
        a(f"s_add_u32 s{T0}, s{T0}, s{T1}")
        a(f"s_mul_i32 s72, s{T0}, 1280")
        a("s_sub_u32 s73, s95, 1")
        a(f"s_mul_i32 s73, s73, {32*3840}")
        a("s_sub_u32 s74, s95, 1")
        a("s_lshl_b32 s74, s74, 13")
        saved = None
        for isA in (True, False):
            if isA:
                a("s_cmp_eq_u32 s95, 0")
                a("s_cbranch_scc0 L_l_B")
                saved = list(self.bars)
            else:
                a.label("L_l_B")
                a.flush_hazards(2)
                self.bars = list(saved)
            per = 16 if isA else 8
            def issue(st):
                base = (st % NSLOT)*SLOT
                for n in range(per):
                    if isA:
                        a(f"s_mov_b32 m0, {base + n*1024}")
                        a(f"s_add_u32 s{T0}, s72, {n*10240 + st*128}")
                        a(f"buffer_load_dwordx4 v6, {srd(rX)}, s{T0} offen lds")
                    else:
                        a(f"s_add_u32 m0, s74, {base + 16384 + n*1024}")
                        a(f"s_add_u32 s{T0}, s73, {(st*64 + n*4)*3840}")
                        a(f"buffer_load_dwordx4 v{7 + ((n >> 1) & 1)}, {srd(rWQKV)}, s{T0} offen lds")
            PD = int(os.environ.get("PD", "3"))
            issue(0); issue(1)
            nissued = 2
            for st in range(NST):
                a(f"s_waitcnt vmcnt({min(63, per*(nissued - st - 1))})")
                self.bar(f"B{st}")
                while nissued < min(NST, st + PD + 1):
                    issue(nissued); nissued += 1
            self.bar("E1")
            if isA: a("s_branch L_l_p1done")
        a.label("L_l_p1done")
        a.flush_hazards(2)
        self.bar("E2")
        a("s_branch L_l_join")
        gemm = list(self.bars)
        a.label("L_l_spare")
        a.flush_hazards(2)
        self.bars = []
        for b in ("SP1", "SP2", "E1", "E2"): self.bar(b)
        self.l_spare_bars = list(self.bars)
        self.bars = gemm
        a.label("L_l_join")
        a.flush_hazards(2)
        a(f"v_mov_b32 v15, {self.L_MODE}")
        a("ds_read_b32 v13, v15")
        a(f"s_and_b32 s84, s{sJ}, 7")
        a(f"s_mul_i32 s84, s84, {100*1024}")
        a(f"s_add_u32 s84, s84, {WOF}")
        a("s_waitcnt lgkmcnt(0)")
        a("v_readfirstlane_b32 s94, v13")
        l1 = self.lab("wo")
        a("s_bitcmp1_b32 s94, 1")
        a(f"s_cbranch_scc0 {l1}")
        self.stamp(1)
        self.l_bulk(84, 0, 12*1024, 100)
        self.stamp(2)
        a.label(l1)
        self.bar("G1")
        self.bar("W1")
        self.bar("X1")
        self.bar("G2")
        l2 = self.lab("wo")
        a("s_bitcmp1_b32 s94, 1")
        a(f"s_cbranch_scc1 {l2}")
        self.l_bulk(84, 0, 12*1024, 100)
        a.label(l2)
        a(f"s_mul_i32 s84, s{sCT}, {120*1024}")
        a(f"s_add_u32 s84, s84, {W1F}")
        self.stamp(4)
        self.l_bulk(84, 0, 112*1024, 48)
        if os.environ.get("L2PF", "0") == "1": self.l_l2pf(W2F, 60)
        self.stamp(5)
        self.bar("W2")
        self.bar("T1")
        self.bar("G3")
        a("s_waitcnt vmcnt(0)")
        self.bar("W3")
        self.bar("M2")
        self.bar("X2")
        self.stamp(6)
        self.l_bulk(84, 48*1024, 0, 72)
        self.stamp(7)
        self.bar("G4")
        a("s_waitcnt vmcnt(0)")
        self.stamp(8)
        self.bar("W4")
        a(f"s_and_b32 s84, s{sJ}, 7")
        a(f"s_mul_i32 s84, s84, {240*1024}")
        a(f"s_add_u32 s84, s84, {W2F}")
        self.bar("C4")
        self.l_bulk(84, 0, 80*1024, 20)
        self.bar("X3")
        self.bar("R3")
        self.stamp(9)
        self.l_bulk(84, 20*1024, 0, 80)
        self.stamp(10)
        self.bar("G5")
        self.stamp(11)
        self.l_bulk(84, 100*1024, 100*1024, 60)
        self.stamp(12)
        a("s_waitcnt vmcnt(0)")
        self.stamp(13)
        self.bar("W5")
        self.bar("C3")
        self.stamp(14)
        self.l_bulk(84, 160*1024, 80*1024, 20)
        self.l_bulk(84, 180*1024, 0, 60)
        self.stamp(15)
        a("s_waitcnt vmcnt(0)")
        self.stamp(16)
        self.bar("C7")
        self.bar("M4")
        self.bar("X4")

    def build(self):
        a = self.a
        self.bars = []
        self.prologue()
        a(f"s_cmp_ge_u32 s{sW}, 8")
        a("s_cbranch_scc1 L_helper")
        a(f"s_lshl_b32 s{T0}, s{sX}, 8")
        a(f"s_lshl_b32 s{T1}, s{sJ}, 3")
        a(f"s_add_u32 s{T0}, s{T0}, s{T1}")
        a(f"s_add_u32 s{T0}, s{T0}, s{sW}")
        a(f"s_mul_i32 s{T0}, s{T0}, 1280")
        a(f"buffer_load_dwordx4 v[140:143], v2, {srd(rX)}, s{T0} offen")
        a("v_lshlrev_b32 v10, 4, v4")
        a(f"buffer_load_dwordx4 v[144:147], v10, {srd(rX)}, s{T0} offen offset:1024")
        self.c_p1(); self.c_p1b(); self.c_pO(); self.c_p2(); self.c_p3(); self.c_p4()
        cb = list(self.bars); csp = self.spare_bars
        a("s_branch L_fin")
        a.label("L_helper")
        a.flush_hazards(2)
        a(f"s_cmp_eq_u32 s{sW}, {SYNCW}")
        a("s_cbranch_scc0 L_loader")
        self.s_prog()
        sb = list(self.bars)
        a("s_branch L_fin")
        a.label("L_loader")
        a.flush_hazards(2)
        self.l_prog()
        lb = list(self.bars)
        assert cb == sb == lb, (cb, sb, lb)
        assert csp == self.s_spare_bars == self.l_spare_bars, (csp, self.s_spare_bars, self.l_spare_bars)
        a.label("L_fin")
        a.flush_hazards(2)
        self.dump_stamps()
        a.label("L_end")
        a("s_endpgm")
        hdr = open(os.path.join(os.path.dirname(os.path.abspath(__file__)), "header.txt")).read().replace("block=(512,1,1)", "block=(768,1,1)")
        tail = f"""
.section .rodata,"a"
.p2align 6
.amdhsa_kernel {NAME}_kernel
  .amdhsa_next_free_vgpr 168
  .amdhsa_next_free_sgpr 102
  .amdhsa_accum_offset 168
  .amdhsa_group_segment_fixed_size 0
  .amdhsa_kernarg_size 88
  .amdhsa_user_sgpr_count 2
  .amdhsa_user_sgpr_kernarg_segment_ptr 1
  .amdhsa_system_sgpr_workgroup_id_x 1
.end_amdhsa_kernel
"""
        return hdr + self.a.text() + tail

if __name__ == "__main__":
    import argparse
    ap = argparse.ArgumentParser()
    ap.add_argument("-o", default="cdna_kernels/%s.s" % NAME)
    ap.add_argument("--gmode", action="store_true")
    ap.add_argument("--timing", action="store_true")
    args = ap.parse_args()
    g = Gen(gmode=args.gmode, timing=args.timing)
    s = g.build()
    open(args.o, "w").write(s)
    print("wrote", args.o, len(s), "bytes; nops inserted:", g.a.nnop)
```
